```python
import torch

def _softmax(x, axis=-1):
    return torch.softmax(x, dim=axis)

def _gelu(x):
    return torch.nn.functional.gelu(x, approximate='tanh')

def _silu(x):
    return torch.nn.functional.silu(x)

def _sigmoid(x):
    return torch.sigmoid(x)

def _layernorm(x, axis=-1, eps=1e-05):
    m = x.mean(dim=axis, keepdim=True)
    v = x.var(dim=axis, keepdim=True, unbiased=False)
    return (x - m) / torch.sqrt(v + eps)

def _scatter_add(tgt, idx, src, axis=0):
    return tgt.clone().index_add_(axis, idx, src)

def _segment_sum(src, seg, n):
    out = torch.zeros((n,) + src.shape[1:], dtype=src.dtype)
    return out.index_add_(0, seg, src)

def _pad(x, pw):
    flat = tuple((v for pair in reversed(pw) for v in pair))
    return torch.nn.functional.pad(x, flat)
kernel_name = 'adaLN_cond__sliding_block__mixer_gmlp__prompt'

def setup_inputs():

    _w = lambda a: (lambda t: t.to(torch.bfloat16) if t.is_floating_point() else t)(torch.as_tensor(a))

    def _A_setup():
        B, S, D = (1, 2048, 448)
        return {'x': _w((lambda *s: torch.randn(*s, dtype=torch.bfloat16) * 0.05)(B, S, D)), 'wqkv': _w((lambda *s: torch.randn(*s, dtype=torch.bfloat16) * 0.05)(D, 3 * D)), 'wo': _w((lambda *s: torch.randn(*s, dtype=torch.bfloat16) * 0.05)(D, D))}
    _A_in = _A_setup()

    def _B_setup():
        B, S, D, F = (1, 2048, 448, 1792)
        Fh = F // 2
        return {'x': _w((lambda *s: torch.randn(*s, dtype=torch.bfloat16) * 0.05)(B, S, D)), 'w_in': _w((lambda *s: torch.randn(*s, dtype=torch.bfloat16) * 0.4)(D, 2 * Fh)), 'w_sp': _w(0.01 * (lambda *s: torch.randn(*s, dtype=torch.bfloat16) * 0.4)(S, S)), 'b_sp': _w(1.0 + 0.01 * (lambda *s: torch.randn(*s, dtype=torch.bfloat16) * 0.05)(S)), 'w_out': _w((lambda *s: torch.randn(*s, dtype=torch.bfloat16) * 0.05)(Fh, D))}
    _B_in = _B_setup()
    return {'A_x': _A_in['x'], 'A_wqkv': _A_in['wqkv'], 'A_wo': _A_in['wo'], 'B_x': _B_in['x'], 'B_w_in': _B_in['w_in'], 'B_w_sp': _B_in['w_sp'], 'B_b_sp': _B_in['b_sp'], 'B_w_out': _B_in['w_out'], 'c': _w((lambda *s: torch.randn(*s, dtype=torch.bfloat16) * 0.1)(1, 448) * 8.0), 'w_mod': _w((lambda *s: torch.randn(*s, dtype=torch.bfloat16) * 0.1)(448, 6 * 448) * 448 ** (-0.5) * 8.0)}

def reference(A_x, A_wqkv, A_wo, B_x, B_w_in, B_w_sp, B_b_sp, B_w_out, c, w_mod):

    def _A_ref(x, wqkv, wo):
        B, S, D = x.shape
        H = 16
        Dh = D // H
        W = 256
        qkv = (lambda x, *d: x.permute(*d))((x @ wqkv).reshape(B, S, 3, H, Dh), 2, 0, 3, 1, 4)
        q, k, v = (qkv[0], qkv[1], qkv[2])
        scores = torch.einsum('bhqd,bhkd->bhqk', q, k) * Dh ** (-0.5)
        idx = torch.arange(S)
        mask = (idx[:, None] - idx[None, :] >= 0) & (idx[:, None] - idx[None, :] < W)
        scores = torch.where(mask[None, None], scores, -1000000000.0)
        p = _softmax(scores, axis=-1)
        o = torch.einsum('bhqk,bhkd->bhqd', p, v)
        return (lambda x, *d: x.permute(*d))(o, 0, 2, 1, 3).reshape(B, S, D) @ wo

    def _B_ref(x, w_in, w_sp, b_sp, w_out):
        B, S, D = x.shape
        F = w_in.shape[-1]
        Fh = F // 2
        z = _gelu(torch.einsum('bsd,df->bsf', x, w_in))
        z1 = z[..., :Fh].clone()
        z2 = _layernorm(z[..., Fh:], axis=-1)
        g = torch.einsum('ts,bsf->btf', w_sp, z2) + b_sp[None, :, None]
        return torch.einsum('bsf,fd->bsd', z1 * g, w_out)
    x = A_x
    mod = (_silu(c) @ w_mod).reshape(c.shape[0], 6, 1, -1)
    sa, ca, ga, sb, cb, gb = (mod[:, 0].clone(), mod[:, 1].clone(), mod[:, 2].clone(), mod[:, 3].clone(), mod[:, 4].clone(), mod[:, 5].clone())
    h = _layernorm(x, axis=-1) * (1 + ca) + sa
    x = x + ga * _A_ref(h, A_wqkv, A_wo)
    h = _layernorm(x, axis=-1) * (1 + cb) + sb
    x = x + gb * _B_ref(h, B_w_in, B_w_sp, B_b_sp, B_w_out)
    return x
```

```python
import re

def v(i, n=1): return f"v{i}" if n == 1 else f"v[{i}:{i+n-1}]"
def a(i, n=1): return f"a{i}" if n == 1 else f"a[{i}:{i+n-1}]"
def s(i, n=1): return f"s{i}" if n == 1 else f"s[{i}:{i+n-1}]"

_REG = re.compile(r"^(-|\|)?(neg\()?([vas])(?:(\d+)|\[(\d+):(\d+)\])\)?\|?$")
def regs_of(tok):
    tok = tok.strip()
    if tok in ("vcc",): return [("s", 106), ("s", 107)]
    if tok in ("vcc_lo",): return [("s", 106)]
    if tok in ("vcc_hi",): return [("s", 107)]
    if tok == "exec": return [("s", 126), ("s", 127)]
    if tok == "exec_lo": return [("s", 126)]
    if tok == "exec_hi": return [("s", 127)]
    if tok == "m0": return [("s", 124)]
    m = _REG.match(tok)
    if not m: return []
    f = m.group(3)
    if m.group(4) is not None: return [(f, int(m.group(4)))]
    return [(f, i) for i in range(int(m.group(5)), int(m.group(6)) + 1)]

def split_ops(txt):
    out, depth, cur = [], 0, ""
    for ch in txt:
        if ch == "[": depth += 1
        if ch == "]": depth -= 1
        if ch == "," and depth == 0:
            out.append(cur.strip()); cur = ""
        else: cur += ch
    if cur.strip(): out.append(cur.strip())
    return out

TRANS = ("v_exp_f32", "v_log_f32", "v_rcp_f32", "v_rsq_f32", "v_sqrt_f32", "v_sin_f32", "v_cos_f32")

class Ins:
    __slots__ = ("text", "op", "kind", "rd", "wr", "ops", "dpp", "cC", "cD", "label")
    def __init__(self, text):
        self.text = text.strip()
        self.rd, self.wr, self.dpp, self.cC, self.cD, self.label = [], [], False, [], [], None
        t = self.text
        if t.endswith(":"):
            self.kind, self.op, self.ops, self.label = "label", "", [], t[:-1]; return
        if t.startswith(".") or t.startswith(";"):
            self.kind, self.op, self.ops = "dir", "", []; return
        parts = t.split(None, 1)
        op = parts[0]; rest = parts[1] if len(parts) > 1 else ""
        self.op = op
        ops = split_ops(rest)
        mods = ""
        if ops:
            last = ops[-1].split(None, 1)
            ops[-1] = last[0]
            mods = last[1] if len(last) > 1 else ""
        self.ops = ops
        base = re.sub(r"_(e32|e64|dpp|sdwa)$", "", op)
        R = lambda k: regs_of(ops[k]) if k < len(ops) else []
        allr = lambda ks: [r for k in ks for r in R(k)]
        if op.startswith("v_mfma"):
            self.kind = "mfma"; self.wr = R(0); self.rd = R(1) + R(2) + R(3); self.cC = R(3); self.cD = R(0)
        elif op.startswith("v_"):
            self.kind = "trans" if base in TRANS else "valu"
            self.dpp = op.endswith("_dpp") or any(k in mods for k in ("row_", "quad_perm", "wave_", "row_bcast"))
            n = len(ops)
            if base.startswith("v_cmp"):
                self.wr = R(0); self.rd = allr(range(1, n))
            elif base in ("v_permlane32_swap_b32", "v_permlane16_swap_b32"):
                self.kind = "permlane"; self.wr = R(0) + R(1); self.rd = R(0) + R(1)
            elif base in ("v_add_co_u32", "v_sub_co_u32", "v_subrev_co_u32"):
                self.wr = R(0) + R(1); self.rd = allr(range(2, n))
            elif base in ("v_addc_co_u32", "v_subb_co_u32"):
                self.wr = R(0) + R(1); self.rd = allr(range(2, n))
            elif base in ("v_fmac_f32", "v_dot2c_f32_bf16", "v_pk_fmac_f16"):
                self.wr = R(0); self.rd = allr(range(0, n))
            elif base in ("v_readfirstlane_b32", "v_readlane_b32"):
                self.kind = "readlane"; self.wr = R(0); self.rd = allr(range(1, n))
            else:
                self.wr = R(0); self.rd = allr(range(1, n))
                if base == "v_cndmask_b32" and n == 3: self.rd += regs_of("vcc")
                if self.dpp: self.rd += R(0)
        elif op.startswith("ds_"):
            self.kind = "ds"
            if op.startswith("ds_read") or op.startswith("ds_bpermute") or op.startswith("ds_permute") or op.startswith("ds_swizzle"):
                self.wr = R(0); self.rd = allr(range(1, len(ops)))
            else:
                self.rd = allr(range(len(ops)))
        elif op.startswith("buffer_") or op.startswith("global_"):
            self.kind = "vmem"
            lds = " lds" in (" " + mods) or mods.startswith("lds")
            if "load" in op and not lds:
                self.wr = R(0); self.rd = allr(range(1, len(ops)))
            elif "load" in op:
                self.rd = allr(range(len(ops))) + regs_of("m0"); self.kind = "vmem_lds"
            elif "atomic" in op:
                self.rd = allr(range(len(ops)))
                if "sc0" in mods: self.wr = R(0)
            elif "store" in op:
                self.rd = allr(range(len(ops)))
                if "x4" in op or "x3" in op:
                    k = 1 if op.startswith("global_") else 0
                    self.cC = R(k)
                    self.kind = "vmem_wide_store"
            else:
                pass
        elif op.startswith("s_"):
            if op in ("s_nop",): self.kind = "nop"
            elif op.startswith("s_waitcnt"): self.kind = "wait"
            elif op in ("s_barrier", "s_endpgm", "s_setprio", "s_sleep"): self.kind = "misc"
            elif op.startswith("s_cbranch") or op in ("s_branch", "s_setpc_b64"): self.kind = "branch"
            elif op.startswith("s_cmp") or op.startswith("s_bitcmp"):
                self.kind = "salu"; self.rd = allr(range(len(ops)))
            elif op.startswith("s_load") or op.startswith("s_memtime") or op.startswith("s_memrealtime") or op.startswith("s_getpc"):
                self.kind = "smem"; self.wr = R(0); self.rd = allr(range(1, len(ops)))
            else:
                self.kind = "salu"; self.wr = R(0); self.rd = allr(range(1, len(ops)))
                if "saveexec" in op: self.wr += regs_of("exec")
        else:
            raise ValueError("cannot parse: " + text)

VALU_KINDS = ("valu", "trans", "permlane", "readlane")

def insert_nops(ins_list):
    out = []
    pos = 0
    last_valu_w = {}
    last_trans_w = {}
    last_valu_sw = {}
    last_mfma_w = {}
    last_mfma_c = {}
    last_store_d = {}
    last_m0 = -100
    def need_for(i):
        need = 0
        def req(p, n):
            nonlocal need
            gap = pos - p - 1
            if gap < n: need = max(need, n - gap)
        k = i.kind
        isv = k in VALU_KINDS
        if k == "mfma":
            for r in i.rd:
                if r in last_valu_w: req(last_valu_w[r], 2)
            c = i.cC
            for r in regs_of(i.ops[1]) + regs_of(i.ops[2]):
                if r in last_mfma_w: req(last_mfma_w[r][0], 8)
            for r in c:
                if r in last_mfma_w:
                    p, f, n = last_mfma_w[r]
                    if not (f == c[0] and n == len(c)): req(p, 6)
                    else: req(p, 0)
            for r in i.wr:
                if r in last_mfma_w:
                    p, f, n = last_mfma_w[r]
                    if not (c and f == c[0] and n == len(c) and c[0] == i.wr[0]): req(p, 6)
        if isv:
            for r in i.rd + i.wr:
                if r in last_mfma_w: req(last_mfma_w[r][0], 8)
            for r in i.wr:
                if r in last_mfma_c: req(last_mfma_c[r], 3)
                if r in last_store_d: req(last_store_d[r], 2)
            for r in i.rd:
                if r[0] == "s" and r in last_valu_sw: req(last_valu_sw[r], 4 if k == "readlane" else 2)
                if r in last_trans_w and k != "trans": req(last_trans_w[r], 1)
                if r in last_trans_w and k == "trans": req(last_trans_w[r], 1)
            if k == "permlane" or i.dpp:
                for r in i.rd:
                    if r in last_valu_w: req(last_valu_w[r], 2)
            if k == "readlane":
                for r in i.rd:
                    if r in last_valu_w: req(last_valu_w[r], 1)
        if k in ("ds", "vmem", "vmem_lds", "vmem_wide_store"):
            for r in i.rd + i.wr:
                if r in last_mfma_w: req(last_mfma_w[r][0], 8)
            for r in i.rd:
                if r[0] == "s" and r in last_valu_sw: req(last_valu_sw[r], 5)
            for r in i.wr:
                if r in last_store_d: req(last_store_d[r], 1)
            if k == "vmem_lds": req(last_m0, 1)
        if k in ("salu", "branch"):
            for r in i.rd:
                if r in last_valu_sw: req(last_valu_sw[r], 4)
            if k == "branch" and ("vcc" in i.op):
                for r in regs_of("vcc"):
                    if r in last_valu_sw: req(last_valu_sw[r], 5)
        return need
    def flush_need():
        need = 0
        for d, n in ((last_valu_w, 2), (last_trans_w, 1), (last_valu_sw, 5), (last_mfma_c, 3), (last_store_d, 2)):
            for p in d.values(): need = max(need, n - (pos - p - 1))
        for p, f, n in last_mfma_w.values(): need = max(need, 8 - (pos - p - 1))
        need = max(need, 1 - (pos - last_m0 - 1))
        return need
    def put_nop(n):
        nonlocal pos
        while n > 0:
            m = min(n, 16)
            out.append(Ins(f"s_nop {m-1}")); pos += m; n -= m
    for i in ins_list:
        if i.kind == "dir":
            out.append(i); continue
        if i.kind == "label" or i.kind == "branch":
            n = max(flush_need(), need_for(i) if i.kind == "branch" else 0)
            if n > 0: put_nop(n)
            out.append(i)
            if i.kind == "branch": pos += 1
            continue
        n = need_for(i)
        if n > 0: put_nop(n)
        out.append(i)
        if i.kind == "nop":
            pos += int(i.ops[0]) + 1; continue
        k = i.kind
        if k in VALU_KINDS:
            for r in i.wr:
                if r[0] == "s": last_valu_sw[r] = pos
                else:
                    last_valu_w[r] = pos
                    last_mfma_w.pop(r, None)
                    if k == "trans": last_trans_w[r] = pos
                    else: last_trans_w.pop(r, None)
        elif k == "mfma":
            for r in i.wr:
                last_mfma_w[r] = (pos, i.wr[0], len(i.wr)); last_valu_w.pop(r, None); last_trans_w.pop(r, None)
            for r in i.cC: last_mfma_c[r] = pos
        elif k == "vmem_wide_store":
            for r in i.cC: last_store_d[r] = pos
        elif k in ("salu", "smem"):
            for r in i.wr:
                last_valu_sw.pop(r, None)
                if r == ("s", 124): last_m0 = pos
        if k in ("ds", "vmem"):
            for r in i.wr:
                last_valu_w.pop(r, None); last_mfma_w.pop(r, None); last_trans_w.pop(r, None)
        pos += 1
        if pos % 64 == 0:
            for d in (last_valu_w, last_trans_w, last_valu_sw, last_mfma_c, last_store_d):
                for r in [r for r, p in d.items() if pos - p > 12]: del d[r]
            for r in [r for r, t in last_mfma_w.items() if pos - t[0] > 12]: del last_mfma_w[r]
    return out

class E:
    def __init__(self):
        self.ins = []
        self.vm_issued = 0; self.vm_done = 0
        self.lg_issued = 0; self.lg_done = 0
        self.nlabel = 0
    def __call__(self, text):
        for line in text.split("\n"):
            line = line.strip()
            if not line: continue
            i = Ins(line)
            self.ins.append(i)
            if i.kind in ("vmem", "vmem_lds", "vmem_wide_store") and not i.op.startswith(("buffer_inv", "buffer_wb")):
                self.vm_issued += 1
            elif i.kind == "ds":
                self.lg_issued += 1
            elif i.kind == "wait":
                m = re.search(r"vmcnt\((\d+)\)", i.text)
                if m: self.vm_done = max(self.vm_done, self.vm_issued - int(m.group(1)))
                m = re.search(r"lgkmcnt\((\d+)\)", i.text)
                if m: self.lg_done = max(self.lg_done, self.lg_issued - int(m.group(1)))
        return self
    def vm(self, text):
        self(text); return self.vm_issued
    def ds(self, text):
        self(text); return self.lg_issued
    def tvm(self): return self.vm_issued
    def tlg(self): return self.lg_issued
    def wait_vm(self, t, force=False):
        if t is None or (t <= self.vm_done and not force): return
        n = self.vm_issued - t
        self(f"s_waitcnt vmcnt({min(n, 63)})")
    def wait_lg(self, t):
        if t is None or t <= self.lg_done: return
        n = self.lg_issued - t
        self(f"s_waitcnt lgkmcnt({min(n, 15)})")
    def wait(self, tvm=None, tlg=None):
        parts = []
        if tvm is not None and tvm > self.vm_done: parts.append(f"vmcnt({min(self.vm_issued - tvm, 63)})")
        if tlg is not None and tlg > self.lg_done: parts.append(f"lgkmcnt({min(self.lg_issued - tlg, 15)})")
        if parts: self("s_waitcnt " + " ".join(parts))
    def drain(self): self("s_waitcnt vmcnt(0) lgkmcnt(0)")
    def barrier(self):
        self.wait_lg(self.lg_issued)
        self("s_barrier")
    def bg_add(self, key, text):
        if not hasattr(self, "bgq"): self.bgq, self.bgt = [], {}
        self.bgq.append((key, text))
    def tick(self, n=1):
        q = getattr(self, "bgq", [])
        while n > 0 and q:
            key, text = q.pop(0)
            self(text)
            self.bgt[key] = self.vm_issued
            n -= 1
    def bg_left(self): return len(getattr(self, "bgq", []))
    def bg_flush(self, key=None):
        q = getattr(self, "bgq", [])
        if key is not None and key in getattr(self, "bgt", {}) and all(k != key for k, _ in q): return
        while q:
            k = q[0][0]
            self.tick()
            if key is not None and k == key and all(kk != key for kk, _ in q): break
    def wait_bg(self, key):
        self.bg_flush(key)
        self.wait_vm(self.bgt[key])
    def paced(self, lines, every):
        k = 0
        for ln in lines:
            self(ln); k += 1
            if k % every == 0: self.tick()
    def snap(self): return (self.vm_issued, self.vm_done, self.lg_issued, self.lg_done)
    def restore(self, st):
        vi, vd, li, ld = st
        self.vm_issued, self.vm_done, self.lg_issued, self.lg_done = vi, vd, li, ld
    def label(self, stem):
        self.nlabel += 1
        return f"L_{stem}_{self.nlabel}"
    def text(self):
        return "\n".join(("" if i.kind == "label" else "  ") + i.text for i in insert_nops(self.ins)) + "\n"

def interleave(main, filler, ratio):
    out, acc, k = [], 0.0, 0
    for m in main:
        out.append(m); acc += ratio
        while acc >= 1.0 and k < len(filler):
            out.append(filler[k]); k += 1; acc -= 1.0
    out.extend(filler[k:])
    return out
```

```python
S, D, H, DH, W = 2048, 448, 16, 28, 256
F, FH = 1792, 896
NWG = 256

WS_EPOCH = 0x0
WS_FW    = 0x1000
WS_F1K   = 0x2000
WS_F1V   = 0x3000
WS_F2    = 0x4000
WS_F3    = 0x5000
WS_F5    = 0x6000
WS_F6    = 0x7000
WS_FAST  = 0xB000
WS_MODG  = 0x8000
WS_ST1   = 0x10000
WS_ST2   = 0x30000
WS_WO    = 0x100000
WS_WIN   = 0x200000
WS_WOUT  = 0x400000
WS_KV    = 0x500000
WS_O     = 0x900000
WS_Y     = 0xB00000
WS_Z     = 0xD00000
WS_G     = 0x1100000
WS_DBG   = 0x1800000
WS_SIZE  = 0x2000000
OOB      = 0x7F000000

L_K  = 0
L_Q  = 50176
L_V  = 50176
L_X  = 100352
L_M  = 157696
L_GS = L_M + 3584
LDS_BYTES = 163840

L_WO  = 0
L_Y   = 65536
L_ST  = 131072
L_TR  = 135168
L_WSP = 0
L_RED = 0

def tok_of(tt, rho):
    return 32 * (tt >> 1) + 8 * (rho >> 2) + 4 * (tt & 1) + (rho & 3)

QSCALE = (28.0 ** -0.5) * 1.4426950408889634
```

```python
import sys, struct, os
sys.path.insert(0, os.path.dirname(os.path.abspath(__file__)))
from emit import *
from layout import *

NAME = "adaLN_cond__sliding_block__mixer_gmlp__prompt_kernel"

DBG, SX, SWQKV, SWO, SWIN, SWSP, SBSP, SWOUT, SC, SWMOD, SOUT, SWS = 4, 8, 12, 16, 20, 24, 28, 32, 36, 40, 44, 48
sW, sCl, sJ, sN = 52, 53, 54, 55
sEX = 56
sHI = 100
sTO = 101
vLane, vL16, vRho, vG = 1, 2, 3, 4

def srd(r): return s(r, 4)
def fbits(x): return struct.unpack("<I", struct.pack("<f", x))[0]
def lit(x): return hex(fbits(x))
MF = "v_mfma_f32_16x16x32_bf16"
POLL_MAX = 1 << 17

class Gen:
    def __init__(self, stop=None, opts=None):
        self.e = E()
        self.stop = stop
        self.o = opts or {}
        self.stamps = []

    def stamp(self, name):
        if not self.o.get("prof"): return
        e = self.e
        k = len(self.stamps); self.stamps.append(name)
        if self.o.get("prof") == "cyc": e("s_memtime s[92:93]\ns_waitcnt lgkmcnt(0)")
        else: e("s_memrealtime s[92:93]\ns_waitcnt lgkmcnt(0)")
        e(f"v_writelane_b32 v0, s92, {k}")

    def stamps_out(self):
        if not self.o.get("prof"): return
        e = self.e
        e(f"s_lshl_b32 s90, s2, 2\ns_add_u32 s90, s90, {s(sW)}\ns_lshl_b32 s90, s90, 8\ns_add_u32 s90, s90, {WS_DBG}")
        e(f"v_lshlrev_b32 v5, 2, {v(vLane)}")
        e(f"buffer_store_dword v0, v5, {srd(SWS)}, s90 offen")

    def end_if_stop(self, name):
        if self.stop == name:
            self.e.bg_flush()
            self.e("s_waitcnt vmcnt(0) lgkmcnt(0)\ns_branch L_end")
            return True
        return False

    def timeout_mark(self):
        e = self.e
        e(f"v_mov_b32 v5, {e.nlabel}\nv_mov_b32 v6, 0")
        e(f"buffer_store_dword v5, v6, {srd(DBG)}, 0 offen")

    def poll(self, loads, checks, stem="poll"):
        e = self.e
        L, Lok = e.label(stem), e.label(stem + "ok")
        fixed = []
        k = 0
        for vd, n, va, so, off in loads:
            if isinstance(so, int):
                e(f"s_mov_b32 {s(92+k)}, {so}"); so = s(92+k); k += 1
            fixed.append((vd, n, va, so, off))
        assert k <= 4
        e(f"s_mov_b32 {s(sTO)}, 0")
        e(f"{L}:")
        st = e.snap()
        for vd, n, va, so, off in fixed:
            op = {1: "buffer_load_dword", 2: "buffer_load_dwordx2", 4: "buffer_load_dwordx4"}[n]
            e(f"{op} {v(vd, n)}, {v(va)}, {srd(SWS)}, {so} offen offset:{off} sc1")
        e("s_waitcnt vmcnt(0)")
        self.tags_differ([c for c, _ in checks])
        e(f"s_cmp_eq_u64 vcc, 0\ns_cbranch_scc1 {Lok}")
        e(f"s_add_u32 {s(sTO)}, {s(sTO)}, 1\ns_cmp_lt_u32 {s(sTO)}, {POLL_MAX}\ns_cbranch_scc1 {L}")
        self.timeout_mark()
        e(f"{Lok}:")
        e.restore(st)
        e.vm_done = e.vm_issued

    def tags_differ(self, regs):
        e = self.e
        for r in regs: e(f"v_xor_b32 {v(r)}, {s(sN)}, {v(r)}")
        acc, rest = regs[0], regs[1:]
        while rest:
            if len(rest) >= 2:
                e(f"v_or3_b32 {v(acc)}, {v(acc)}, {v(rest[0])}, {v(rest[1])}"); rest = rest[2:]
            else:
                e(f"v_or_b32 {v(acc)}, {v(acc)}, {v(rest[0])}"); rest = rest[1:]
        e(f"v_cmp_ne_u32 vcc, 0, {v(acc)}")

    def spoll(self, soff, stem, blk=None):
        e = self.e
        L, Lok = e.label(stem), e.label(stem + "ok")
        e(f"s_add_u32 s96, {s(SWS)}, {soff}\ns_addc_u32 s97, {s(SWS+1)}, 0")
        e(f"s_mov_b32 s98, {s(sN)}\ns_mov_b32 s99, {s(sN)}\ns_mov_b32 {s(sTO)}, 0")
        e(f"{L}:")
        e("s_load_dwordx8 s[84:91], s[96:97], 0 glc\ns_waitcnt lgkmcnt(0)")
        for k in range(4): e(f"s_xor_b64 s[{84+2*k}:{85+2*k}], s[{84+2*k}:{85+2*k}], s[98:99]")
        if blk:
            for i in range(8): e(f"s_add_u32 s82, {blk}, {i}\ns_cmp_ge_u32 s82, 8\ns_cselect_b32 {s(84+i)}, {s(84+i)}, 0")
        e("s_or_b64 s[84:85], s[84:85], s[86:87]\ns_or_b64 s[88:89], s[88:89], s[90:91]\ns_or_b64 s[84:85], s[84:85], s[88:89]")
        e(f"s_cmp_eq_u64 s[84:85], 0\ns_cbranch_scc1 {Lok}")
        e(f"s_add_u32 {s(sTO)}, {s(sTO)}, 1\ns_cmp_lt_u32 {s(sTO)}, {POLL_MAX}\ns_cbranch_scc1 {L}")
        st = e.snap()
        self.timeout_mark()
        e.restore(st)
        e(f"{Lok}:")

    def flag_store(self, soff):
        e = self.e
        e(f"v_mov_b32 v5, {s(sN)}\ns_mov_b64 exec, 1")
        e(f"buffer_store_dword v5, off, {srd(SWS)}, {soff} sc1")
        e("s_mov_b64 exec, -1")

    def publish(self, soff, pre=0, post=0):
        e = self.e
        t = e.tvm()
        e.tick(pre)
        e.wait_vm(t)
        e.barrier()
        L = e.label("pub")
        st = e.snap()
        e(f"s_cmp_eq_u32 {s(sW)}, 0\ns_cbranch_scc0 {L}")
        self.flag_store(soff)
        e(f"{L}:")
        e.restore(st)
        e.tick(post)

    def allreduce_g(self, r, tmp, op):
        e = self.e
        o = {"add": "v_add_f32", "max": "v_max_f32"}[op]
        e(f"v_mov_b32 {v(tmp)}, {v(r)}\nv_permlane32_swap_b32 {v(r)}, {v(tmp)}\n{o} {v(r)}, {v(r)}, {v(tmp)}")
        e(f"v_mov_b32 {v(tmp)}, {v(r)}\nv_permlane16_swap_b32 {v(r)}, {v(tmp)}\n{o} {v(r)}, {v(r)}, {v(tmp)}")

    def allreduce_g2(self, r0, r1, t0, t1, op):
        e = self.e
        o = {"add": "v_add_f32", "max": "v_max_f32"}[op]
        for sw in ("v_permlane32_swap_b32", "v_permlane16_swap_b32"):
            e(f"v_mov_b32 {v(t0)}, {v(r0)}\nv_mov_b32 {v(t1)}, {v(r1)}\n{sw} {v(r0)}, {v(t0)}\n{sw} {v(r1)}, {v(t1)}")
            e(f"{o} {v(r0)}, {v(r0)}, {v(t0)}\n{o} {v(r1)}, {v(r1)}, {v(t1)}")

    def prologue(self):
        e = self.e
        e("s_cmp_ge_u32 s2, 256\ns_cbranch_scc1 L_end")
        e("s_load_dwordx16 s[56:71], s[0:1], 0\ns_load_dwordx8 s[72:79], s[0:1], 64\ns_load_dwordx2 s[80:81], s[0:1], 96")
        if not self.o.get("nopf"): self.code_prefetch()
        e(f"v_and_b32 {v(vLane)}, 63, v0\nv_lshrrev_b32 v5, 6, v0")
        e(f"v_readfirstlane_b32 {s(sW)}, v5")
        e(f"v_lshlrev_b32 {v(vL16)}, 4, {v(vLane)}\nv_and_b32 {v(vRho)}, 15, {v(vLane)}\nv_lshrrev_b32 {v(vG)}, 4, {v(vLane)}")
        e("s_and_b32 s82, s2, 7\ns_lshr_b32 s83, s82, 1\ns_and_b32 s84, s82, 1\ns_lshr_b32 s85, s2, 3")
        e(f"s_lshr_b32 s86, s85, 2\ns_lshl_b32 s83, s83, 3\ns_add_u32 {s(sCl)}, s83, s86")
        e(f"s_and_b32 s85, s85, 3\ns_lshl_b32 s84, s84, 2\ns_add_u32 {s(sJ)}, s84, s85")
        e(f"s_mov_b32 {s(sHI)}, 0xffff0000")
        e("s_waitcnt lgkmcnt(0)")
        ptr = {SWS: (80, WS_SIZE), SC: (72, 896), SWMOD: (74, 2408448), SX: (56, 1835008), SWQKV: (58, 1204224), SWO: (60, 401408),
               SWIN: (64, 1605632), SWSP: (66, 8388608), SBSP: (68, 4096), SWOUT: (70, 802816), SOUT: (76, 1835008), DBG: (78, 256)}
        for r, (p, n) in ptr.items():
            e(f"s_mov_b32 {s(r)}, {s(p)}\ns_mov_b32 {s(r+1)}, {s(p+1)}\ns_mov_b32 {s(r+2)}, {n}\ns_mov_b32 {s(r+3)}, 0x20000")
        self.t_epoch = e.vm(f"buffer_load_dword v6, off, {srd(SWS)}, 0 sc1")

    def code_prefetch(self):
        e = self.e
        lo, hi = int(self.o.get("pf_lo", 240)), int(self.o.get("pf_hi", 256))
        st = e.snap()
        e(f"s_sub_u32 s82, s2, {lo}\ns_cmp_lt_u32 s82, {hi - lo}\ns_cbranch_scc0 L_nopf")
        e("s_getpc_b64 s[84:85]\nL_pf_pc:")
        e(f"s_sub_u32 s84, s84, L_pf_pc-{NAME}\ns_subb_u32 s85, s85, 0")
        e("v_lshlrev_b32 v5, 7, v0")
        e(f"s_mov_b32 s83, L_end-{NAME}")
        for k in range(2):
            e(f"v_add_u32 v6, {k*32768}, v5\nv_min_u32 v6, s83, v6\nglobal_load_dword a255, v6, s[84:85]")
        e("L_nopf:")
        e.restore(st)

    def nonce(self, nyounger):
        e = self.e
        e(f"s_waitcnt vmcnt({nyounger})")
        e("v_readfirstlane_b32 s82, v6")
        e(f"s_mul_i32 s82, s82, 0x9E3779B1\ns_add_u32 {s(sN)}, s82, 0x7F4A7C15")

    GW, GC, GA = 16, 44, 52
    def gemv_loads(self):
        e = self.e
        GW, GC = self.GW, self.GC
        st = e.snap()
        e("s_cmp_lt_u32 s2, 84\ns_cbranch_scc0 L_nogemv_ld")
        e(f"v_lshrrev_b32 v7, 2, {v(vLane)}\nv_mul_u32_u24 v8, 5376, v7\nv_and_b32 v9, 3, {v(vLane)}\nv_lshlrev_b32 v9, 4, v9\nv_add_u32 v8, v8, v9")
        e("v_lshlrev_b32 v7, 1, v7")
        e(f"s_mul_i32 s82, {s(sW)}, {112*5376}\ns_lshl_b32 s83, s2, 6\ns_add_u32 s82, s82, s83\ns_mul_i32 s83, {s(sW)}, 224")
        for n in range(7):
            e(f"buffer_load_dwordx4 {v(GW+4*n,4)}, v8, {srd(SWMOD)}, s82 offen")
            if n < 6: e(f"s_add_u32 s82, s82, {16*5376}")
        for n in range(7):
            e(f"buffer_load_ushort {v(GC+n)}, v7, {srd(SC)}, s83 offen offset:{32*n}")
        e("L_nogemv_ld:")
        e.restore(st)

    def x_dma(self):
        e = self.e
        e(f"v_lshrrev_b32 v7, 5, {v(vLane)}\nv_lshlrev_b32 v7, 3, v7\nv_bfe_u32 v8, {v(vLane)}, 3, 2\nv_add_u32 v7, v7, v8\nv_mul_u32_u24 v7, 896, v7")
        e(f"v_and_b32 v8, 7, {v(vLane)}\nv_xor_b32 v8, v8, {v(vG)}\nv_xor_b32 v9, 4, v8\nv_lshlrev_b32 v8, 4, v8\nv_lshlrev_b32 v9, 4, v9")
        e("v_add_u32 v8, v7, v8\nv_add_u32 v9, v7, v9")
        e(f"s_lshl_b32 s82, {s(sCl)}, 6\ns_lshr_b32 s83, {s(sW)}, 1\ns_lshl_b32 s83, s83, 5\ns_add_u32 s82, s82, s83\ns_and_b32 s83, {s(sW)}, 1\ns_lshl_b32 s83, s83, 2\ns_add_u32 s82, s82, s83")
        e(f"s_mul_i32 s82, s82, 896\ns_lshl_b32 s84, {s(sW)}, 11\ns_add_u32 s84, s84, {L_X}")
        for cb in range(7):
            for par in range(2):
                e(f"s_add_u32 m0, s84, {cb*8192 + par*1024}\ns_add_u32 s83, s82, {par*16*896 + cb*128}")
                e(f"buffer_load_dwordx4 {v(8+par)}, {srd(SX)}, s83 offen lds")
        self.t_x = e.tvm()

    def w7_lane(self, dst, stride):
        e = self.e
        e(f"v_mul_u32_u24 v10, 37, {v(vLane)}\nv_lshrrev_b32 v10, 8, v10\nv_mul_u32_u24 v11, 7, v10\nv_sub_u32 v11, {v(vLane)}, v11\nv_lshlrev_b32 v11, 4, v11")
        e(f"v_mul_u32_u24 v10, {stride}, v10\nv_add_u32 {v(dst)}, v10, v11")

    vWo = 12
    def wqkv_setup(self):
        e = self.e
        self.w7_lane(self.vWo, 2688)
        e(f"s_mul_i32 s75, {s(sW)}, {112*2688}\ns_mul_i32 s82, {s(sJ)}, 112\ns_add_u32 s75, s75, s82\ns_mul_i32 s76, {s(sW)}, {112*112}")

    def wqkv_bg(self, T, lbase, key):
        e = self.e
        for n in range(14):
            e.bg_add(key, f"s_add_u32 s81, s75, {T*896 + n*8*2688}\ns_add_u32 m0, s76, {lbase + n*896}\ns_mov_b32 exec_hi, 0x00ffffff\nbuffer_load_dwordx4 {v(self.vWo)}, {srd(SWQKV)}, s81 offen lds\ns_mov_b32 exec_hi, -1")

    L_PP = L_V + 37632
    def prepass_issue(self):
        e = self.e
        st = e.snap()
        e(f"s_mul_i32 s86, s2, 3\ns_add_u32 s86, s86, {s(sW)}")
        e(f"s_cmp_lt_u32 {s(sW)}, 3\ns_cselect_b32 s86, s86, 9999")
        e(f"s_mul_i32 s87, {s(sW)}, 4096\ns_add_u32 s87, s87, {self.L_PP}")
        e("s_mov_b32 m0, s87")
        e("s_cmp_lt_u32 s86, 392\ns_cbranch_scc0 L_pp_not_win_i")
        e(f"s_mul_hi_u32 s82, s86, {(1<<32)//28+1}\ns_mul_i32 s83, s82, 28\ns_sub_u32 s83, s86, s83")
        e(f"v_lshrrev_b32 v10, 3, {v(vLane)}\nv_mul_u32_u24 v10, 3584, v10\nv_and_b32 v11, 7, {v(vLane)}\nv_lshlrev_b32 v11, 4, v11\nv_add_u32 v10, v10, v11")
        e(f"s_mul_i32 s84, s82, {32*3584}\ns_lshl_b32 s85, s83, 7\ns_add_u32 s84, s84, s85")
        for n in range(4):
            e(f"buffer_load_dwordx4 v10, {srd(SWIN)}, s84 offen lds")
            if n < 3: e(f"s_add_u32 s84, s84, {8*3584}\ns_add_u32 m0, m0, 1024")
        e("s_branch L_pp_issued")
        e("L_pp_not_win_i:")
        e("s_cmp_lt_u32 s86, 744\ns_cbranch_scc0 L_pp_issued")
        self.w7_lane(13, 896)
        e("s_mov_b32 exec_hi, 0x00ffffff")
        e("s_cmp_lt_u32 s86, 520\ns_cbranch_scc0 L_pp_wout_i")
        e("s_sub_u32 s82, s86, 392\ns_lshr_b32 s83, s82, 4\ns_and_b32 s82, s82, 15")
        e(f"s_mul_i32 s84, s82, {28*896}\ns_mul_i32 s85, s83, 112\ns_add_u32 s84, s84, s85")
        for n in range(4):
            e(f"buffer_load_dwordx4 v13, {srd(SWO)}, s84 offen lds")
            if n < 3: e(f"s_add_u32 s84, s84, {8*896}\ns_add_u32 m0, m0, 896")
        e("s_branch L_pp_issued7")
        e("L_pp_wout_i:")
        e(f"s_sub_u32 s82, s86, 520\ns_mul_hi_u32 s83, s82, {(1<<32)//28+1}\ns_mul_i32 s84, s83, 28\ns_sub_u32 s82, s82, s84")
        e(f"s_mul_i32 s84, s82, {32*896}\ns_mul_i32 s85, s83, 112\ns_add_u32 s84, s84, s85")
        for n in range(4):
            e(f"buffer_load_dwordx4 v13, {srd(SWOUT)}, s84 offen lds")
            if n < 3: e(f"s_add_u32 s84, s84, {8*896}\ns_add_u32 m0, m0, 896")
        e("L_pp_issued7:")
        e("s_mov_b32 exec_hi, -1")
        e("L_pp_issued:")
        e.restore(st)

    def prepass_finish(self, t_after):
        e = self.e
        e.wait_vm(t_after, force=True)
        st = e.snap()
        R = self.PPR
        e(f"s_mul_i32 s86, s2, 3\ns_add_u32 s86, s86, {s(sW)}")
        e(f"s_cmp_lt_u32 {s(sW)}, 3\ns_cbranch_scc0 L_pp_done")
        e(f"s_mul_i32 s87, {s(sW)}, 4096\ns_add_u32 s87, s87, {self.L_PP}")
        e(f"v_lshrrev_b32 v10, 2, {v(vRho)}\nv_and_b32 v11, 3, {v(vRho)}")
        e("s_cmp_lt_u32 s86, 392\ns_cbranch_scc0 L_pp_not_win_f")
        e(f"s_mul_hi_u32 s82, s86, {(1<<32)//28+1}\ns_mul_i32 s83, s82, 28\ns_sub_u32 s83, s86, s83")
        e(f"v_lshlrev_b32 v14, 3, {v(vG)}\nv_add_u32 v14, v14, v10\nv_lshlrev_b32 v14, 7, v14\nv_lshlrev_b32 v11, 3, v11\nv_add_u32 v14, v14, v11\nv_add_u32 v14, s87, v14")
        for q in range(4):
            for par in range(2):
                e(f"ds_read_b64_tr_b16 {v(R+4*q+2*par,2)}, v14 offset:{par*512 + q*32}")
        for q in range(4):
            e(f"s_lshl_b32 s84, s83, 2\ns_add_u32 s84, s84, {q}\ns_cmp_ge_u32 s84, 56\ns_cselect_b32 s85, 1, 0\ns_mul_i32 s88, s85, 56\ns_sub_u32 s84, s84, s88")
            e(f"s_mul_i32 s88, s84, 37\ns_lshr_b32 s88, s88, 8\ns_mul_i32 s89, s88, 7\ns_sub_u32 s84, s84, s89")
            e(f"s_lshl_b32 s88, s88, 1\ns_add_u32 s88, s88, s85\ns_lshl_b32 s88, s88, 3\ns_add_u32 s88, s88, s84\ns_mul_i32 s88, s88, 14\ns_add_u32 s88, s88, s82")
            e(f"s_lshl_b32 s88, s88, 10\ns_add_u32 s88, s88, {WS_WIN}")
            if q == 0: e("s_waitcnt lgkmcnt(0)")
            e(f"buffer_store_dwordx4 {v(R+4*q,4)}, {v(vL16)}, {srd(SWS)}, s88 offen sc1")
        e("s_branch L_pp_done")
        e("L_pp_not_win_f:")
        e("s_cmp_lt_u32 s86, 744\ns_cbranch_scc0 L_pp_done")
        e(f"v_cmp_gt_u32 vcc, 12, {v(vRho)}\nv_cndmask_b32 v15, 0, -1, vcc")
        e("s_cmp_lt_u32 s86, 520\ns_cbranch_scc0 L_pp_wout_f")
        e("s_sub_u32 s88, s86, 392")
        e(f"v_lshlrev_b32 v14, 2, {v(vG)}\nv_add_u32 v14, v14, v10\nv_mul_u32_u24 v14, 112, v14\nv_lshlrev_b32 v11, 4, v11\nv_add_u32 v14, v14, v11\nv_add_u32 v14, s87, v14")
        for ft in range(4):
            for par in range(2):
                e(f"ds_read_b64_tr_b16 {v(R+4*ft+2*par,2)}, v14 offset:{par*16*112 + 64*(ft>>1) + 8*(ft&1)}")
        e(f"v_cmp_gt_u32 vcc, 3, {v(vG)}\nv_cndmask_b32 v13, 0, -1, vcc")
        e("s_waitcnt lgkmcnt(0)")
        for ft in range(4):
            e(f"v_and_b32 {v(R+4*ft+2)}, v13, {v(R+4*ft+2)}\nv_and_b32 {v(R+4*ft+3)}, v13, {v(R+4*ft+3)}")
        e(f"s_lshl_b32 s88, s88, 12\ns_add_u32 s88, s88, {WS_WO}")
        e("s_branch L_pp_st7")
        e("L_pp_wout_f:")
        e("s_sub_u32 s88, s86, 520")
        e(f"v_lshlrev_b32 v14, 3, {v(vG)}\nv_add_u32 v14, v14, v10\nv_mul_u32_u24 v14, 112, v14\nv_lshlrev_b32 v11, 4, v11\nv_add_u32 v14, v14, v11\nv_add_u32 v14, s87, v14")
        for ft in range(4):
            for par in range(2):
                e(f"ds_read_b64_tr_b16 {v(R+4*ft+2*par,2)}, v14 offset:{par*4*112 + 64*(ft>>1) + 8*(ft&1)}")
        e("s_waitcnt lgkmcnt(0)")
        e(f"s_lshl_b32 s88, s88, 12\ns_add_u32 s88, s88, {WS_WOUT}")
        e("L_pp_st7:")
        for ft in (2, 3):
            for k in range(4): e(f"v_and_b32 {v(R+4*ft+k)}, v15, {v(R+4*ft+k)}")
        for ft in range(4):
            e(f"buffer_store_dwordx4 {v(R+4*ft,4)}, {v(vL16)}, {srd(SWS)}, s88 offen offset:{ft*1024} sc1")
        e("L_pp_done:")
        e.restore(st)
        return e.tvm()

    def prepass_flag(self, t_after):
        e = self.e
        e.wait_vm(t_after, force=True)
        st = e.snap()
        e(f"s_cmp_lt_u32 {s(sW)}, 3\ns_cbranch_scc0 L_pp_flagged")
        e(f"s_mul_i32 s86, s2, 3\ns_add_u32 s86, s86, {s(sW)}\ns_lshl_b32 s88, s86, 2\ns_add_u32 s88, s88, {WS_FW}")
        self.flag_store("s88")
        e("L_pp_flagged:")
        e.restore(st)

    def gemv_compute(self, nyounger):
        e = self.e
        GW, GC, GA = self.GW, self.GC, self.GA
        st = e.snap()
        e("s_cmp_lt_u32 s2, 84\ns_cbranch_scc0 L_nogemv")
        e(f"s_waitcnt vmcnt({min(nyounger, 63)})")
        for n in range(7):
            c = GC + n
            e(f"v_lshlrev_b32 {v(c)}, 16, {v(c)}")
        for n in range(7): e(f"v_mul_f32 {v(60+n)}, {lit(-1.4426950408889634)}, {v(GC+n)}")
        for n in range(7): e(f"v_exp_f32 {v(60+n)}, {v(60+n)}")
        for n in range(7): e(f"v_add_f32 {v(60+n)}, 1.0, {v(60+n)}")
        for n in range(7): e(f"v_rcp_f32 {v(60+n)}, {v(60+n)}")
        for n in range(7): e(f"v_mul_f32 {v(60+n)}, {v(60+n)}, {v(GC+n)}")
        for n in range(7): e(f"v_cvt_pk_bf16_f32 {v(60+n)}, {v(60+n)}, {v(60+n)}")
        for n in range(7): e(f"v_lshlrev_b32 {v(GC+n)}, 16, {v(60+n)}")
        for n in range(7):
            for q in range(4):
                w = GW + 4*n + q
                e(f"v_lshlrev_b32 v60, 16, {v(w)}\nv_and_b32 v61, {s(sHI)}, {v(w)}")
                if n == 0: e(f"v_mul_f32 {v(GA+2*q)}, v60, {v(GC+n)}\nv_mul_f32 {v(GA+2*q+1)}, v61, {v(GC+n)}")
                else: e(f"v_fmac_f32 {v(GA+2*q)}, v60, {v(GC+n)}\nv_fmac_f32 {v(GA+2*q+1)}, v61, {v(GC+n)}")
        for rot in (4, 8):
            for k in range(8):
                e(f"v_add_f32_dpp {v(GA+k)}, {v(GA+k)}, {v(GA+k)} row_ror:{rot} row_mask:0xf bank_mask:0xf")
        e(f"v_lshlrev_b32 v60, 7, {v(vG)}\nv_and_b32 v61, 3, {v(vLane)}\nv_lshlrev_b32 v61, 5, v61\nv_add_u32 v60, v60, v61")
        e(f"s_lshl_b32 s82, {s(sW)}, 9\ns_add_u32 s82, s82, {L_GS}\nv_add_u32 v60, s82, v60")
        e(f"ds_write_b128 v60, {v(GA,4)}\nds_write_b128 v60, {v(GA+4,4)} offset:16")
        e("s_waitcnt lgkmcnt(0)\ns_barrier")
        e(f"s_cmp_eq_u32 {s(sW)}, 3\ns_cbranch_scc0 L_nogemv")
        e(f"v_and_b32 v60, 31, {v(vLane)}\nv_lshlrev_b32 v60, 2, v60\nv_lshrrev_b32 v61, 5, {v(vLane)}\nv_lshlrev_b32 v61, 10, v61\nv_add_u32 v60, v60, v61\nv_add_u32 v60, {L_GS}, v60")
        for p in range(8): e(f"ds_read_b32 {v(GA+p)}, v60 offset:{p*128}")
        e("s_waitcnt lgkmcnt(0)")
        for p in range(1, 8): e(f"v_add_f32 {v(GA)}, {v(GA)}, {v(GA+p)}")
        e(f"v_mov_b32 v61, {v(GA)}\nv_permlane32_swap_b32 {v(GA)}, v61\nv_add_f32 {v(GA)}, {v(GA)}, v61")
        e(f"v_cvt_pk_bf16_f32 v60, {v(GA)}, {v(GA)}\nv_lshlrev_b32 v60, 16, v60")
        e("s_sub_u32 s82, s2, 14\ns_cmp_lt_u32 s82, 14\ns_cselect_b32 s83, 1, 0\ns_sub_u32 s82, s2, 56\ns_cmp_lt_u32 s82, 14\ns_cselect_b32 s83, 1, s83")
        e("s_cmp_eq_u32 s83, 1\ns_cbranch_scc0 L_gemv_noplus")
        e("v_add_f32 v60, 1.0, v60\nv_cvt_pk_bf16_f32 v60, v60, v60\nv_lshlrev_b32 v60, 16, v60")
        e("L_gemv_noplus:")
        e("v_mov_b32_dpp v61, v60 quad_perm:[1,0,3,2] row_mask:0xf bank_mask:0xf")
        e(f"v_cvt_pk_bf16_f32 v62, v60, v61\nv_mov_b32 v63, {s(sN)}")
        e(f"v_and_b32 v60, 31, {v(vLane)}\nv_lshlrev_b32 v60, 2, v60")
        e(f"s_lshl_b32 s82, s2, 7\ns_add_u32 s82, s82, {WS_MODG}")
        e("s_mov_b32 exec_lo, 0x55555555\ns_mov_b32 exec_hi, 0")
        e(f"buffer_store_dwordx2 v[62:63], v60, {srd(SWS)}, s82 offen sc1")
        e("s_mov_b64 exec, -1")
        e("L_nogemv:")
        e.restore(st)

    XB = 16
    PPR = 64
    def XR(self, st, tau): return self.XB + (st*2 + tau)*8
    AS, AQ = [248, 250], [252, 254]
    def ln1(self):
        e = self.e
        AS, AQ = self.AS, self.AQ
        e(f"v_lshrrev_b32 v6, 1, {v(vRho)}\nv_xor_b32 v6, v6, {v(vG)}\nv_xor_b32 v7, 4, v6\nv_lshlrev_b32 v6, 4, v6\nv_lshlrev_b32 v7, 4, v7")
        e(f"v_lshlrev_b32 v9, 7, {v(vRho)}\nv_add_u32 v6, v6, v9\nv_add_u32 v7, v7, v9")
        e(f"s_lshr_b32 s82, {s(sW)}, 1\ns_lshl_b32 s82, s82, 12\ns_add_u32 s82, s82, {L_X}")
        e("v_add_u32 v6, s82, v6\nv_add_u32 v7, s82, v7")
        tk = {}
        def rd(st):
            for tau in range(2):
                tk[st, tau] = e.ds(f"ds_read_b128 {v(self.XR(st,tau)+4,4)}, {v(6+(st&1))} offset:{(st>>1)*8192 + tau*2048}")
        for st in range(3): rd(st)
        for st in range(14):
            if st + 3 < 14: rd(st + 3)
            for tau in range(2):
                e.wait_lg(tk[st, tau])
                X = self.XR(st, tau)
                for q in range(4): e(f"v_lshlrev_b32 {v(X+q)}, 16, {v(X+4+q)}")
                for q in range(4): e(f"v_and_b32 {v(X+4+q)}, {s(sHI)}, {v(X+4+q)}")
                e.tick()
            for tau in range(2):
                X = self.XR(st, tau)
                for q in range(4):
                    if st == 0 and q == 0:
                        e(f"v_pk_add_f32 {v(AS[tau],2)}, {v(X,2)}, {v(X+2,2)}\nv_pk_mul_f32 {v(AQ[tau],2)}, {v(X,2)}, {v(X,2)}")
                    else:
                        if not (st == 0 and q == 1): e(f"v_pk_add_f32 {v(AS[tau],2)}, {v(AS[tau],2)}, {v(X+2*q,2)}")
                        e(f"v_pk_fma_f32 {v(AQ[tau],2)}, {v(X+2*q,2)}, {v(X+2*q,2)}, {v(AQ[tau],2)}")

    def ln1_finish(self):
        e = self.e
        AS, AQ = self.AS, self.AQ
        for tau in range(2):
            e(f"v_add_f32 {v(AS[tau])}, {v(AS[tau])}, {v(AS[tau]+1)}\nv_add_f32 {v(AQ[tau])}, {v(AQ[tau])}, {v(AQ[tau]+1)}")
        self.allreduce_g2(AS[0], AS[1], 6, 7, "add")
        self.allreduce_g2(AQ[0], AQ[1], 6, 7, "add")
        for tau in range(2):
            S_, Q_ = AS[tau], AQ[tau]
            e(f"v_mul_f32 {v(S_)}, {lit(1/448)}, {v(S_)}\nv_mul_f32 {v(Q_)}, {lit(1/448)}, {v(Q_)}")
            e(f"v_fma_f32 {v(Q_)}, -{v(S_)}, {v(S_)}, {v(Q_)}")
            e(f"v_max_f32 {v(Q_)}, 0, {v(Q_)}\nv_add_f32 {v(Q_)}, {lit(1e-5)}, {v(Q_)}\nv_rsq_f32 {v(Q_)}, {v(Q_)}")
        for tau in range(2):
            S_, Q_ = AS[tau], AQ[tau]
            e(f"v_mul_f32_e64 {v(S_+1)}, -{v(S_)}, {v(Q_)}\nv_mov_b32 {v(S_)}, {v(Q_)}")
        k = 0
        for st in range(14):
            for tau in range(2):
                X = self.XR(st, tau)
                for q in range(4):
                    e(f"v_pk_fma_f32 {v(X+2*q,2)}, {v(X+2*q,2)}, {v(AS[tau],2)}, {v(AS[tau],2)} op_sel:[0,0,1] op_sel_hi:[1,0,1]")
                    k += 1
                    if k % 12 == 0: e.tick()

    def mod_wait1(self):
        e = self.e
        st = e.snap()
        e(f"s_cmp_eq_u32 {s(sW)}, 3\ns_cbranch_scc0 L_mod1_skip")
        R = 240
        e(f"v_add_u32 v7, 192, {v(vLane)}\nv_min_u32 v7, 223, v7\nv_lshlrev_b32 v8, 4, v7")
        self.poll([(R, 4, vL16, WS_MODG, 0), (R+4, 4, vL16, WS_MODG, 1024), (R+8, 4, vL16, WS_MODG, 2048), (R+12, 4, 8, WS_MODG, 0)],
                  [(R+1, None), (R+3, None), (R+5, None), (R+7, None), (R+9, None), (R+11, None), (R+13, None), (R+15, None)], stem="mod1")
        e(f"v_lshrrev_b32 v8, 1, {v(vLane)}\nv_lshlrev_b32 v8, 5, v8\nv_and_b32 v9, 1, {v(vLane)}\nv_lshlrev_b32 v9, 3, v9\nv_add_u32 v8, v8, v9\nv_add_u32 v8, {L_M}, v8")
        e(f"v_lshrrev_b32 v9, 1, v7\nv_lshlrev_b32 v9, 5, v9\nv_and_b32 v7, 1, v7\nv_lshlrev_b32 v7, 3, v7\nv_add_u32 v9, v9, v7\nv_add_u32 v9, {L_M}, v9")
        for i in range(4):
            r = R + 4*i
            e(f"v_lshlrev_b32 {v(r+1)}, 16, {v(r+2)}\nv_and_b32 {v(r+3)}, {s(sHI)}, {v(r+2)}\nv_and_b32 {v(r+2)}, {s(sHI)}, {v(r)}\nv_lshlrev_b32 {v(r)}, 16, {v(r)}")
            a_, off = (8, i*1024) if i < 3 else (9, 0)
            e(f"ds_write_b64 {v(a_)}, {v(r,2)} offset:{off}\nds_write_b64 {v(a_)}, {v(r+2,2)} offset:{off+16}")
        e("s_waitcnt lgkmcnt(0)")
        e("L_mod1_skip:")
        e.restore(st)

    def modulate(self):
        e = self.e
        e(f"v_lshlrev_b32 v7, 5, {v(vG)}\nv_add_u32 v7, {L_M}, v7")
        free = [240, 244, 248, 252, 8]
        hs = [(st, hh) for st in range(14) for hh in range(2)]
        buf, tk = {}, {}
        nxt = 0
        def issue():
            nonlocal nxt
            while nxt < len(hs) and len(free) >= 2 and e.lg_issued - e.lg_done <= 12:
                st, hh = hs[nxt]
                m, sa = free.pop(0), free.pop(0)
                e.ds(f"ds_read_b128 {v(m,4)}, v7 offset:{1792 + st*128 + hh*16}")
                tk[nxt] = e.ds(f"ds_read_b128 {v(sa,4)}, v7 offset:{st*128 + hh*16}")
                buf[nxt] = (m, sa); nxt += 1
        issue()
        for k, (st, hh) in enumerate(hs):
            e.wait_lg(tk[k])
            m, sa = buf[k]
            for tau in range(2):
                X = self.XR(st, tau) + 4*hh
                for q in range(2):
                    e(f"v_pk_fma_f32 {v(X+2*q,2)}, {v(X+2*q,2)}, {v(m+2*q,2)}, {v(sa+2*q,2)}")
            for tau in range(2):
                X = self.XR(st, tau)
                for q in range(2):
                    e(f"v_cvt_pk_bf16_f32 {v(X+2*hh+q)}, {v(X+4*hh+2*q)}, {v(X+4*hh+2*q+1)}")
            free += [m, sa]
            if hh == 1: free += [self.XR(st,0)+4, self.XR(st,1)+4]
            issue()
            e.tick()

    def up(self, st, tau): return self.XR(st, tau) + 4
    def qkv_gemm(self, which, lbase):
        e = self.e
        up = self.up
        base = {"k": 0, "v": 2, "q": 4}[which]
        acc = [[up(base, 0), up(base, 1)], [up(base+1, 0), up(base+1, 1)]]
        ring = [[up(6+k, 0), up(6+k, 1)] for k in range(4)]
        if which == "k":
            e(f"v_lshrrev_b32 v8, 2, {v(vRho)}\nv_lshlrev_b32 v8, 1, v8\nv_lshlrev_b32 v6, 3, {v(vG)}\nv_add_u32 v6, v6, v8\nv_mul_u32_u24 v6, 112, v6")
            e(f"v_and_b32 v8, 3, {v(vRho)}\nv_lshlrev_b32 v8, 3, v8\nv_add_u32 v6, v6, v8")
            e(f"s_and_b32 s82, {s(sW)}, 1\ns_mul_i32 s82, s82, 56\nv_add_u32 v6, s82, v6")
        e(f"v_add_u32 v7, {lbase}, v6")
        tk = {}
        def rd(st):
            for td in range(2):
                b = ring[st % 4][td]
                for par in range(2):
                    tk[st] = e.ds(f"ds_read_b64_tr_b16 {v(b+2*par,2)}, v7 offset:{st*3584 + par*112 + 32*td}")
        rd(0); rd(1); rd(2)
        for st in range(14):
            if st + 3 < 14: rd(st + 3)
            e.wait_lg(tk[st])
            for tau in range(2):
                for td in range(2):
                    w, h = v(ring[st % 4][td], 4), v(self.XR(st, tau), 4)
                    A, B = (h, w) if which == "v" else (w, h)
                    c = v(acc[tau][td], 4) if st else "0"
                    e(f"{MF} {v(acc[tau][td],4)}, {A}, {B}, {c}")
            e.tick()
        return acc

    def KF(self, tau): return self.XR(11, tau) + 4
    def VF(self, td): return self.XR(12, td) + 4
    def QF(self, tau): return self.XR(13, tau) + 4
    def kvq_setup(self):
        e = self.e
        e(f"s_and_b32 s82, {s(sW)}, 1\ns_lshl_b32 s83, {s(sJ)}, 1\ns_add_u32 s58, s83, s82")
        e(f"s_lshr_b32 s82, {s(sW)}, 1\ns_lshl_b32 s83, {s(sCl)}, 1\ns_add_u32 s59, s83, s82")
        e(f"s_lshl_b32 s82, s58, 6\ns_add_u32 s82, s82, s59\ns_lshl_b32 s60, s82, 12\ns_add_u32 s60, s60, {WS_KV}")
        e(f"s_lshl_b32 s61, s82, 2\ns_add_u32 s61, s61, {WS_F1K}")
        e(f"v_cmp_gt_u32 vcc, 3, {v(vG)}\nv_cndmask_b32 v13, 0, -1, vcc")
        e(f"v_cmp_gt_u32 vcc, 12, {v(vRho)}\nv_cndmask_b32 v14, 0, -1, vcc")
        e(f"v_cmp_eq_u32 vcc, 12, {v(vRho)}\nv_mov_b32 v15, 0x3f803f80\nv_cndmask_b32 v15, 0, v15, vcc")

    def k_epilogue(self, acc):
        e = self.e
        for tau in range(2):
            for td in range(2):
                A = acc[tau][td]
                e(f"v_cvt_pk_bf16_f32 {v(self.KF(tau)+2*td)}, {v(A)}, {v(A+1)}\nv_cvt_pk_bf16_f32 {v(self.KF(tau)+2*td+1)}, {v(A+2)}, {v(A+3)}")
            e(f"v_and_b32 {v(self.KF(tau)+2)}, v13, {v(self.KF(tau)+2)}\nv_and_b32 {v(self.KF(tau)+3)}, v13, {v(self.KF(tau)+3)}")
            e(f"buffer_store_dwordx4 {v(self.KF(tau),4)}, {v(vL16)}, {srd(SWS)}, s60 offen offset:{tau*1024} sc1")

    def v_epilogue(self, acc):
        e = self.e
        for td in range(2):
            for tau in range(2):
                A = acc[tau][td]
                e(f"v_cvt_pk_bf16_f32 {v(self.VF(td)+2*tau)}, {v(A)}, {v(A+1)}\nv_cvt_pk_bf16_f32 {v(self.VF(td)+2*tau+1)}, {v(A+2)}, {v(A+3)}")
            if td == 1:
                for k in range(4): e(f"v_and_or_b32 {v(self.VF(1)+k)}, {v(self.VF(1)+k)}, v14, v15")
            e(f"buffer_store_dwordx4 {v(self.VF(td),4)}, {v(vL16)}, {srd(SWS)}, s60 offen offset:{(2+td)*1024} sc1")

    def q_epilogue(self, acc):
        e = self.e
        e(f"s_mov_b32 s82, {lit(QSCALE)}")
        for tau in range(2):
            for td in range(2):
                A = acc[tau][td]
                for k in range(4): e(f"v_mul_f32 {v(A+k)}, s82, {v(A+k)}")
                e(f"v_cvt_pk_bf16_f32 {v(self.QF(tau)+2*td)}, {v(A)}, {v(A+1)}\nv_cvt_pk_bf16_f32 {v(self.QF(tau)+2*td+1)}, {v(A+2)}, {v(A+3)}")
            e(f"v_and_b32 {v(self.QF(tau)+2)}, v13, {v(self.QF(tau)+2)}\nv_and_b32 {v(self.QF(tau)+3)}, v13, {v(self.QF(tau)+3)}")

    SB, OB = 16, 160
    def SR(self, i, tq): return self.SB + (i*2 + tq)*8
    def OR_(self, td, tq): return self.OB + (td*2 + tq)*4
    def att_bias(self):
        e = self.e
        e(f"v_lshrrev_b32 v5, 2, {v(vRho)}\nv_sub_u32 v5, v5, {v(vG)}\nv_lshlrev_b32 v5, 3, v5\nv_and_b32 v6, 3, {v(vRho)}\nv_add_u32 v5, v5, v6")
        e(f"v_mov_b32 v6, {lit(-1e30)}\nv_mov_b32 v7, 0")
        for tq in range(2):
            for tk in range(2):
                for r in range(4):
                    e(f"v_cmp_le_i32 {s(82+2*r,2)}, {4*(tk-tq)+r}, v5")
                for r in range(4):
                    e(f"v_cndmask_b32 {v(self.SR(8,tq)+4*tk+r)}, v6, v7, {s(82+2*r,2)}")
                    e(f"v_cndmask_b32 {v(self.SR(0,tq)+4*tk+r)}, v7, v6, {s(82+2*r,2)}")

    FWR, M2R = 240, (252, 16 + 20*8 + 4)
    def late_loads(self):
        e = self.e
        e(f"s_lshl_b32 s82, {s(sW)}, 6\nv_add_u32 v10, s82, {v(vLane)}\nv_min_u32 v10, 223, v10\nv_lshlrev_b32 v9, 4, v10")
        e(f"s_mov_b32 s92, {WS_FW}\ns_mov_b32 s93, {WS_MODG + 3584}")
        for k in range(3): e(f"buffer_load_dwordx4 {v(self.FWR+4*k,4)}, {v(vL16)}, {srd(SWS)}, s92 offen offset:{k*1024} sc1")
        e(f"buffer_load_dwordx4 {v(self.M2R[0],4)}, v9, {srd(SWS)}, s93 offen sc1")
        e(f"buffer_load_dwordx4 {v(self.M2R[1],4)}, v9, {srd(SWS)}, s93 offen offset:3584 sc1")
        return e.tvm()

    def late_check(self, t):
        e = self.e
        e.wait_vm(t)
        chk = [self.FWR + k for k in range(12)] + [self.M2R[0]+1, self.M2R[0]+3, self.M2R[1]+1, self.M2R[1]+3]
        Lok = e.label("lateok")
        self.tags_differ(chk)
        e(f"s_cmp_eq_u64 vcc, 0\ns_cbranch_scc1 {Lok}")
        st = e.snap()
        self.poll([(self.FWR, 4, vL16, WS_FW, 0), (self.FWR+4, 4, vL16, "s92", 1024), (self.FWR+8, 4, vL16, "s92", 2048),
                   (self.M2R[0], 4, 9, WS_MODG + 3584, 0), (self.M2R[1], 4, 9, "s93", 3584)], [(c, None) for c in chk], stem="late")
        e.restore(st)
        e(f"{Lok}:")
        A, B = self.M2R
        e(f"v_lshlrev_b32 v10, 3, v10\nv_add_u32 v10, {L_M}, v10")
        e(f"v_mov_b32 {v(A+1)}, {v(A+2)}\nv_mov_b32 {v(B+1)}, {v(B+2)}")
        e(f"ds_write_b64 v10, {v(A,2)}\nds_write_b64 v10, {v(B,2)} offset:1792")

    def att_load_groups(self, abase, off, key):
        out = []
        for i in range(8):
            for t in range(2):
                out.append(((key, i*2+t), f"buffer_load_dwordx4 {a(abase + (i*2+t)*4, 4)}, {v(vL16)}, {srd(SWS)}, {s(84+i)} offen offset:{off + t*1024} sc1"))
        return out

    def att_offsets(self):
        e = self.e
        for i in range(8):
            e(f"s_add_u32 s82, s59, {i}\ns_sub_u32 s83, s60, {(8-i)*4096}\ns_cmp_ge_u32 s82, 8\ns_cselect_b32 {s(84+i)}, s83, {OOB}")

    def att_scores(self):
        e = self.e
        for i in [8] + list(range(8)):
            for t in range(2):
                if i < 8: e.wait_vm(e.bgt["k", i*2+t])
                A = v(self.KF(t), 4) if i == 8 else a((i*2+t)*4, 4)
                for tq in range(2):
                    D = v(self.SR(i, tq) + 4*t, 4)
                    e(f"{MF} {D}, {A}, {v(self.QF(tq),4)}, {D if i in (0, 8) else 0}")
                if i < 8: e.tick()
        e("s_cmp_ge_u32 s59, 8\ns_cbranch_scc1 L_att_nofix")
        e(f"v_mov_b32 v6, {lit(-1e30)}")
        for i in range(8):
            e(f"s_add_u32 s82, s59, {i}\ns_cmp_ge_u32 s82, 8\ns_cbranch_scc1 L_att_nofix")
            for r in range(16): e(f"v_mov_b32 {v(self.SR(i,0)+r)}, v6")
        e("L_att_nofix:")

    def att_softmax_pv(self, ntick):
        e = self.e
        M = [176, 178]
        chains = []
        for tq in range(2):
            regs = [self.SR(i, tq) + r for i in [8] + list(range(8)) for r in range(8)]
            c = [f"v_max3_f32 {v(M[tq])}, {v(regs[0])}, {v(regs[1])}, {v(regs[2])}", f"v_max_f32 {v(M[tq])}, {v(M[tq])}, {v(regs[3])}"]
            c += [f"v_max3_f32 {v(M[tq])}, {v(M[tq])}, {v(regs[k])}, {v(regs[k+1])}" for k in range(4, 72, 2)]
            chains.append(c)
        k = 0
        for x, y in zip(*chains):
            e(x); e(y); k += 1
            if k % 6 == 0: e.tick()
        self.allreduce_g2(M[0], M[1], 5, 6, "max")
        units = [(i, tq) for i in [8] + list(range(8)) for tq in range(2)]
        first = set()
        def pv(u):
            i, tq = u
            out = []
            for td in range(2):
                A = v(self.VF(td), 4) if i == 8 else a(64 + (i*2+td)*4, 4)
                O = v(self.OR_(td, tq), 4)
                c = O if (td, tq) in first else "0"
                first.add((td, tq))
                out.append((None if i == 8 else ("v", i*2+td), f"{MF} {O}, {A}, {v(self.SR(i,tq),4)}, {c}"))
            return out
        def emit_pv(item):
            key, txt = item
            if key is not None: e.wait_bg(key)
            e(txt)
        prev = None
        for n, u in enumerate(units):
            i, tq = u
            B = self.SR(i, tq)
            for q in range(4):
                e(f"v_pk_add_f32 {v(B+2*q,2)}, {v(B+2*q,2)}, {v(M[tq],2)} op_sel_hi:[1,0] neg_lo:[0,1] neg_hi:[0,1]")
            pm = pv(prev) if prev else []
            for k in range(8):
                e(f"v_exp_f32 {v(B+k)}, {v(B+k)}")
                if k in (1, 3) and pm: emit_pv(pm.pop(0))
                if k in (5, 7) and ntick > 0 and (k == 5 or n % 2 == 0):
                    e.tick(); ntick -= 1
            for q in range(4):
                e(f"v_cvt_pk_bf16_f32 {v(B+q)}, {v(B+2*q)}, {v(B+2*q+1)}")
            prev = u
        for it in pv(prev): emit_pv(it)

    def att_epilogue(self):
        e = self.e
        e(f"s_lshr_b32 s82, {s(sW)}, 1\ns_lshl_b32 s82, s82, 1\ns_lshl_b32 s83, {s(sCl)}, 2\ns_add_u32 s82, s82, s83\ns_lshl_b32 s82, s82, 4\ns_add_u32 s82, s82, s58\ns_lshl_b32 s82, s82, 10\ns_add_u32 s64, s82, {WS_O}\ns_add_u32 s65, s64, 16384")
        e(f"s_lshl_b32 s82, {s(sCl)}, 7\ns_add_u32 s62, s82, {WS_F2}\ns_lshl_b32 s83, {s(sJ)}, 2\ns_add_u32 s66, s62, s83")
        L = [8, 10]
        for tq in range(2): e(f"v_mov_b32 {v(L[tq])}, {v(self.OR_(1,tq))}\nv_mov_b32 {v(L[tq]+1)}, {v(self.OR_(1,tq))}")
        for tq in range(2): e(f"v_permlane32_swap_b32 {v(L[tq])}, {v(L[tq]+1)}")
        for tq in range(2): e(f"v_mov_b32 {v(L[tq])}, {v(L[tq]+1)}")
        for tq in range(2): e(f"v_permlane16_swap_b32 {v(L[tq])}, {v(L[tq]+1)}")
        for tq in range(2): e(f"v_rcp_f32 {v(L[tq])}, {v(L[tq]+1)}")
        for tq in range(2):
            P = 180 + 4*tq
            for td in range(2):
                O = self.OR_(td, tq)
                for q in range(2): e(f"v_pk_mul_f32 {v(O+2*q,2)}, {v(O+2*q,2)}, {v(L[tq],2)} op_sel_hi:[1,0]")
                e(f"v_cvt_pk_bf16_f32 {v(P+2*td)}, {v(O)}, {v(O+1)}\nv_cvt_pk_bf16_f32 {v(P+2*td+1)}, {v(O+2)}, {v(O+3)}")
            e(f"buffer_store_dwordx4 {v(P,4)}, {v(vL16)}, {srd(SWS)}, {s(64+tq)} offen sc1")
        self.publish("s66", pre=12, post=16)

    def wo_bg(self):
        e = self.e
        e(f"s_lshl_b32 s75, {s(sJ)}, 16\ns_lshl_b32 s76, {s(sW)}, 14\ns_add_u32 s75, s75, s76\ns_add_u32 s75, s75, {WS_WO}")
        for n in range(16):
            e.bg_add("wo", f"s_add_u32 s81, s75, {n*1024}\ns_add_u32 m0, s76, {L_WO + n*1024}\nbuffer_load_dwordx4 {v(vL16)}, {srd(SWS)}, s81 offen sc1 lds")

    WZ2, WZ1 = 128, 0
    def win_bg(self, part, sb):
        e = self.e
        base = self.WZ2 if part else self.WZ1
        for tl in range(2):
            e(f"s_lshl_b32 s82, {s(sJ)}, 1\ns_add_u32 s82, s82, {part}\ns_lshl_b32 s82, s82, 3\ns_lshl_b32 s83, {s(sW)}, 1\ns_add_u32 s83, s83, {tl}\ns_add_u32 s82, s82, s83")
            e(f"s_mul_i32 s82, s82, {14*1024}\ns_add_u32 s82, s82, {WS_WIN}\ns_cmp_lt_u32 s83, 7\ns_cselect_b32 {s(sb+tl)}, s82, {OOB}")
        for st in range(14):
            for tl in range(2):
                e.bg_add(("win", part), f"s_add_u32 s81, {s(sb+tl)}, {(st >> 2)*4096}\nbuffer_load_dwordx4 {a(base + (tl*14+st)*4, 4)}, {v(vL16)}, {srd(SWS)}, s81 offen offset:{(st & 3)*1024} sc1")

    X1 = 248
    def row_offset(self, dst):
        e = self.e
        e(f"v_lshrrev_b32 v6, 2, {v(vRho)}\nv_lshlrev_b32 v6, 3, v6\nv_and_b32 v7, 3, {v(vRho)}\nv_add_u32 v6, v6, v7")
        e(f"s_lshr_b32 s82, {s(sW)}, 1\ns_lshl_b32 s82, s82, 5\ns_and_b32 s83, {s(sW)}, 1\ns_lshl_b32 s83, s83, 2\ns_add_u32 s82, s82, s83\ns_lshl_b32 s83, {s(sCl)}, 6\ns_add_u32 s82, s82, s83")
        e(f"v_add_u32 v6, s82, v6\nv_mul_u32_u24 v6, 896, v6\nv_lshlrev_b32 v7, 4, {v(vG)}\nv_add_u32 {v(dst)}, v6, v7\ns_mul_i32 s67, {s(sJ)}, 112")

    def xslice_bg(self):
        e = self.e
        self.row_offset(247)
        e.bg_add("xs", f"buffer_load_dwordx4 v[188:191], v247, {srd(SX)}, s67 offen")
        e.bg_add("xs", f"buffer_load_dwordx4 v[192:195], v247, {srd(SX)}, s67 offen offset:64")

    def p3(self, held):
        e = self.e
        OF, ACC, RING = 16, 80, 96
        self.spoll("s62", "f2")
        self.stamp("f2poll")
        e(f"s_lshl_b32 s82, {s(sCl)}, 2\ns_add_u32 s82, s82, {s(sW)}\ns_lshl_b32 s82, s82, 14\ns_add_u32 s82, s82, {WS_O}")
        to = []
        for h in range(16):
            to.append(e.vm(f"buffer_load_dwordx4 {v(OF+4*h,4)}, {v(vL16)}, {srd(SWS)}, s82 offen offset:{(h & 3)*1024} sc1"))
            if (h & 3) == 3 and h < 15: e("s_add_u32 s82, s82, 4096")
        e(f"v_add_u32 v7, {L_WO}, {v(vL16)}")
        tk = {}
        def rd(h):
            for ft in range(4):
                tk[h] = e.ds(f"ds_read_b128 {v(RING + ((h % 3)*4 + ft)*4, 4)}, v7 offset:{(h*4+ft)*1024}")
        rd(0); rd(1)
        GA, M2 = 144, 152
        e(f"v_lshlrev_b32 v8, 4, {v(vG)}\ns_mul_i32 s82, {s(sJ)}, 112\ns_add_u32 s82, s82, {L_M}\nv_add_u32 v8, s82, v8")
        e(f"ds_read_b128 {v(GA,4)}, v8\nds_read_b128 {v(GA+4,4)}, v8 offset:64\nds_read_b128 {v(M2,4)}, v8 offset:1792\nds_read_b128 {v(M2+4,4)}, v8 offset:{1792+64}")
        e(f"v_cmp_gt_u32 vcc, 3, {v(vG)}\nv_cndmask_b32 v9, 0, -1, vcc")
        for h in range(16):
            if h + 2 < 16: rd(h + 2)
            e.wait(tvm=to[h], tlg=tk[h])
            for ft in range(4):
                D = v(ACC + 4*ft, 4)
                e(f"{MF} {D}, {v(RING + ((h % 3)*4 + ft)*4, 4)}, {v(OF+4*h,4)}, {D if h else 0}")
            e.tick()
        self.stamp("p3gemm")
        for k in range(4): e(f"v_and_b32 {v(192+k)}, v9, {v(192+k)}")
        XU, GU, MU = 16, 32, 48
        for k in range(8):
            e(f"v_lshlrev_b32 {v(XU+2*k)}, 16, {v(188+k)}\nv_and_b32 {v(XU+2*k+1)}, {s(sHI)}, {v(188+k)}")
            e(f"v_lshlrev_b32 {v(GU+2*k)}, 16, {v(GA+k)}\nv_and_b32 {v(GU+2*k+1)}, {s(sHI)}, {v(GA+k)}")
        for k in range(8):
            e(f"v_pk_fma_f32 {v(XU+2*k,2)}, {v(GU+2*k,2)}, {v(ACC+2*k,2)}, {v(XU+2*k,2)}")
        for k in range(8): e(f"v_cvt_pk_bf16_f32 {v(self.X1+k)}, {v(XU+2*k)}, {v(XU+2*k+1)}")
        for k in range(8):
            e(f"v_lshlrev_b32 {v(XU+2*k)}, 16, {v(self.X1+k)}\nv_and_b32 {v(XU+2*k+1)}, {s(sHI)}, {v(self.X1+k)}")
            e(f"v_lshlrev_b32 {v(MU+2*k)}, 16, {v(M2+k)}\nv_and_b32 {v(MU+2*k+1)}, {s(sHI)}, {v(M2+k)}")
        YP = 64
        for k in range(8):
            e(f"v_pk_mul_f32 {v(MU+2*k,2)}, {v(MU+2*k,2)}, {v(XU+2*k,2)}")
        for k in range(8): e(f"v_cvt_pk_bf16_f32 {v(YP+k)}, {v(MU+2*k)}, {v(MU+2*k+1)}")
        e(f"s_lshl_b32 s82, {s(sCl)}, 2\ns_add_u32 s82, s82, {s(sW)}\ns_mul_i32 s82, s82, 14336\ns_mul_i32 s83, {s(sJ)}, 1792\ns_add_u32 s82, s82, s83\ns_add_u32 s82, s82, {WS_Y}")
        e(f"buffer_store_dwordx4 {v(YP,4)}, {v(vL16)}, {srd(SWS)}, s82 offen sc1")
        e("s_mov_b32 exec_hi, 0x0000ffff")
        e(f"buffer_store_dwordx4 {v(YP+4,4)}, {v(vL16)}, {srd(SWS)}, s82 offen offset:1024 sc1")
        e("s_mov_b32 exec_hi, -1")
        SS, QQ = 72, 74
        e(f"v_pk_add_f32 {v(SS,2)}, {v(XU,2)}, {v(XU+2,2)}\nv_pk_mul_f32 {v(QQ,2)}, {v(XU,2)}, {v(XU,2)}")
        for k in range(2, 8): e(f"v_pk_add_f32 {v(SS,2)}, {v(SS,2)}, {v(XU+2*k,2)}")
        for k in range(1, 8): e(f"v_pk_fma_f32 {v(QQ,2)}, {v(XU+2*k,2)}, {v(XU+2*k,2)}, {v(QQ,2)}")
        e(f"v_add_f32 {v(SS)}, {v(SS)}, {v(SS+1)}\nv_add_f32 {v(SS+1)}, {v(QQ)}, {v(QQ+1)}")
        self.allreduce_g2(SS, SS+1, 5, 6, "add")
        e(f"s_lshl_b32 s82, {s(sCl)}, 3\ns_add_u32 s82, s82, {s(sJ)}\ns_lshl_b32 s82, s82, 9\ns_lshl_b32 s83, {s(sW)}, 7\ns_add_u32 s82, s82, s83\ns_add_u32 s82, s82, {WS_ST1}")
        e(f"v_lshlrev_b32 v7, 3, {v(vRho)}")
        e("s_mov_b32 exec_lo, 0xffff\ns_mov_b32 exec_hi, 0")
        e(f"buffer_store_dwordx2 {v(SS,2)}, v7, {srd(SWS)}, s82 offen sc1")
        e("s_mov_b64 exec, -1")
        e(f"s_lshl_b32 s82, {s(sCl)}, 7\ns_add_u32 s62, s82, {WS_F3}\ns_lshl_b32 s83, {s(sJ)}, 2\ns_add_u32 s66, s62, s83")
        e.bgq = held
        self.publish("s66", pre=12, post=32)

    A2, A1, YR = 16, 48, 80
    UVD, UU, VV, MSR = 128, 144, 160, 176
    ST1R, ST2R, Z1P = 188, 196, 232
    def reduce4(self, r0, r1, r2, r3):
        e = self.e
        e(f"v_permlane32_swap_b32 {v(r0)}, {v(r2)}\nv_permlane32_swap_b32 {v(r1)}, {v(r3)}")
        e(f"v_add_f32 {v(r0)}, {v(r0)}, {v(r2)}\nv_add_f32 {v(r1)}, {v(r1)}, {v(r3)}")
        e(f"v_permlane16_swap_b32 {v(r0)}, {v(r1)}\nv_add_f32 {v(r0)}, {v(r0)}, {v(r1)}")

    def stats_finish(self, S_, Q_, n, out, kind):
        e = self.e
        e(f"v_mul_f32 {v(S_)}, {lit(1/n)}, {v(S_)}\nv_mul_f32 {v(Q_)}, {lit(1/n)}, {v(Q_)}")
        e(f"v_fma_f32 {v(Q_)}, -{v(S_)}, {v(S_)}, {v(Q_)}\nv_max_f32 {v(Q_)}, 0, {v(Q_)}\nv_add_f32 {v(Q_)}, {lit(1e-5)}, {v(Q_)}")
        e(f"v_rsq_f32 {v(out)}, {v(Q_)}")
        if kind == "mean": e(f"v_mov_b32 {v(out+1)}, {v(S_)}")
        else: e(f"v_mul_f32_e64 {v(out+1)}, -{v(S_)}, {v(out)}")

    def uv_mfmas(self, part):
        e = self.e
        base, k0 = (self.WZ2, 0) if part else (self.WZ1, 2)
        e(f"v_and_b32 v8, 1, {v(vRho)}\nv_mul_u32_u24 v8, 896, v8\nv_lshlrev_b32 v9, 4, {v(vG)}\nv_sub_u32 v8, v9, v8\nv_add_u32 v8, {L_M + 1792}, v8")
        tk = {}
        def rd(st): tk[st] = e.ds(f"ds_read_b128 {v(self.MSR + (st % 3)*4, 4)}, v8 offset:{st*64}")
        rd(0); rd(1)
        e.wait_bg(("win", part))
        for st in range(14):
            if st + 2 < 14: rd(st + 2)
            e.wait_lg(tk[st])
            for tl in range(2):
                D = v(self.UVD + 4*(k0+tl), 4)
                e(f"{MF} {D}, {a(base + (tl*14+st)*4, 4)}, {v(self.MSR + (st % 3)*4, 4)}, {D if st else 0}")

    def uv_extract(self, part):
        e = self.e
        k0 = 0 if part else 2
        for k in range(k0, k0+2):
            for r in range(4):
                e(f"v_mov_b32_dpp {v(self.UU+4*k+r)}, {v(self.UVD+4*k+r)} quad_perm:[0,0,2,2] row_mask:0xf bank_mask:0xf")
                e(f"v_mov_b32_dpp {v(self.VV+4*k+r)}, {v(self.UVD+4*k+r)} quad_perm:[1,1,3,3] row_mask:0xf bank_mask:0xf")

    def p4_head(self):
        e = self.e
        self.spoll("s62", "f3")
        self.stamp("f3poll")
        e(f"s_lshl_b32 s82, {s(sCl)}, 2\ns_add_u32 s82, s82, {s(sW)}\ns_mul_i32 s82, s82, 14336\ns_add_u32 s82, s82, {WS_Y}")
        e(f"s_mul_i32 s83, {s(sW)}, 14336\ns_add_u32 m0, s83, {L_Y}")
        e(f"v_lshlrev_b32 v7, 10, {v(vG)}\nv_lshlrev_b32 v8, 3, {v(vRho)}\nv_add_u32 v7, v7, v8")
        e(f"s_lshl_b32 s84, {s(sCl)}, 12\ns_lshl_b32 s85, {s(sW)}, 7\ns_add_u32 s84, s84, s85\ns_add_u32 s84, s84, {WS_ST1}")
        e(f"buffer_load_dwordx2 v[204:205], v7, {srd(SWS)}, s84 offen sc1")
        t_s = e.vm(f"buffer_load_dwordx2 v[206:207], v7, {srd(SWS)}, s84 offen offset:512 sc1")
        for n in range(14):
            e(f"buffer_load_dwordx4 {v(vL16)}, {srd(SWS)}, s82 offen sc1 lds")
            if n < 13: e("s_add_u32 s82, s82, 1024\ns_add_u32 m0, m0, 1024")
        t_y = e.tvm()
        self.uv_mfmas(1)
        e.wait_vm(t_s)
        e("v_add_f32 v204, v204, v206\nv_add_f32 v205, v205, v207")
        self.allreduce_g2(204, 205, 5, 6, "add")
        self.stats_finish(204, 205, 448, 206, "mean")
        e(f"s_lshl_b32 s82, {s(sW)}, 7\ns_add_u32 s82, s82, {L_ST}\nv_lshlrev_b32 v7, 3, {v(vRho)}\nv_add_u32 v7, s82, v7")
        e("ds_write_b64 v7, v[206:207]")
        self.uv_extract(1)
        e.wait_vm(t_y)
        e.barrier()
        e(f"v_lshlrev_b32 v7, 3, {v(vRho)}\nv_add_u32 v7, {L_ST}, v7")
        for tt in range(4): e(f"ds_read_b64 {v(self.ST1R+2*tt,2)}, v7 offset:{tt*128}")

    def p4_gemm(self, part, tick_every):
        e = self.e
        base = self.WZ2 if part else self.WZ1
        A = self.A2 if part else self.A1
        e(f"v_add_u32 v7, {L_Y}, {v(vL16)}")
        tk = {}
        def rd(st):
            for tt in range(4):
                tk[st] = e.ds(f"ds_read_b128 {v(self.YR + ((st % 3)*4 + tt)*4, 4)}, v7 offset:{tt*14336 + st*1024}")
        rd(0); rd(1)
        k = 0
        for st in range(14):
            if st + 2 < 14: rd(st + 2)
            e.wait_lg(tk[st])
            for tl in range(2):
                for tt in range(4):
                    D = v(A + (tl*4+tt)*4, 4)
                    e(f"{MF} {D}, {a(base + (tl*14+st)*4, 4)}, {v(self.YR + ((st % 3)*4 + tt)*4, 4)}, {D if st else 0}")
                    k += 1
                    if tick_every and k % tick_every == 0: e.tick()

    def gelu_consts(self):
        e = self.e
        c = 2.0 * 0.7978845608028654 * 1.4426950408889634
        e(f"s_mov_b32 s68, {lit(-c*0.044715)}\ns_mov_b32 s69, {lit(-c)}\ns_mov_b32 s70, 1.0\ns_mov_b32 s71, 1.0")

    def p4_act(self, part, tick=True):
        e = self.e
        A = self.A2 if part else self.A1
        k0 = 0 if part else 2
        T = 208
        items = [(tl, tt) for tl in range(2) for tt in range(4)]
        for tl, tt in items:
            st = v(self.ST1R + 2*tt, 2)
            X = [v(A + (tl*4+tt)*4 + 2*q, 2) for q in range(2)]
            U = [v(self.UU + 4*(k0+tl) + 2*q, 2) for q in range(2)]
            V_ = [v(self.VV + 4*(k0+tl) + 2*q, 2) for q in range(2)]
            t = [T + 4*((tl*4+tt) & 1) + 2*q for q in range(2)]
            for q in range(2): e(f"v_pk_fma_f32 {X[q]}, {U[q]}, {st}, {X[q]} op_sel:[0,1,0] op_sel_hi:[1,1,1] neg_lo:[0,1,0] neg_hi:[0,1,0]")
            for q in range(2): e(f"v_pk_fma_f32 {X[q]}, {X[q]}, {st}, {V_[q]} op_sel:[0,0,0] op_sel_hi:[1,0,1]")
            for q in range(2): e(f"v_pk_mul_f32 {v(t[q],2)}, {X[q]}, {X[q]}")
            for q in range(2): e(f"v_pk_fma_f32 {v(t[q],2)}, {v(t[q],2)}, s[68:69], s[68:69] op_sel:[0,0,1] op_sel_hi:[1,0,1]")
            for q in range(2): e(f"v_pk_mul_f32 {v(t[q],2)}, {v(t[q],2)}, {X[q]}")
            for q in range(2): e(f"v_exp_f32 {v(t[q])}, {v(t[q])}\nv_exp_f32 {v(t[q]+1)}, {v(t[q]+1)}")
            if tick: e.tick()
            for q in range(2): e(f"v_pk_add_f32 {v(t[q],2)}, {v(t[q],2)}, s[70:71]")
            for q in range(2): e(f"v_rcp_f32 {v(t[q])}, {v(t[q])}\nv_rcp_f32 {v(t[q]+1)}, {v(t[q]+1)}")
            if tick: e.tick()
            for q in range(2): e(f"v_pk_mul_f32 {X[q]}, {X[q]}, {v(t[q],2)}")

    def p4_z2_stats(self):
        e = self.e
        A = self.A2
        SS, QQ = 208, 216
        for tt in range(4):
            S_, Q_ = v(SS+2*tt, 2), v(QQ+2*tt, 2)
            xs = [A + (tl*4+tt)*4 + 2*q for tl in range(2) for q in range(2)]
            e(f"v_pk_add_f32 {S_}, {v(xs[0],2)}, {v(xs[1],2)}\nv_pk_mul_f32 {Q_}, {v(xs[0],2)}, {v(xs[0],2)}")
            for x0, x1 in zip(xs[2:] + [None], xs[1:]):
                if x0 is not None: e(f"v_pk_add_f32 {S_}, {S_}, {v(x0,2)}")
                e(f"v_pk_fma_f32 {Q_}, {v(x1,2)}, {v(x1,2)}, {Q_}")
        for tt in range(4):
            e(f"v_add_f32 {v(SS+2*tt)}, {v(SS+2*tt)}, {v(SS+2*tt+1)}\nv_add_f32 {v(QQ+2*tt)}, {v(QQ+2*tt)}, {v(QQ+2*tt+1)}")
        self.reduce4(SS, SS+2, SS+4, SS+6)
        self.reduce4(QQ, QQ+2, QQ+4, QQ+6)
        e(f"v_mov_b32 {v(SS+1)}, {v(QQ)}")
        e(f"s_lshl_b32 s82, {s(sW)}, 9\ns_add_u32 s82, s82, {L_ST + 1024}\nv_lshlrev_b32 v7, 3, {v(vLane)}\nv_add_u32 v7, s82, v7")
        e(f"ds_write_b64 v7, {v(SS,2)}")
        e(f"v_lshlrev_b32 v7, 9, {v(vG)}\nv_lshlrev_b32 v8, 3, {v(vRho)}\nv_add_u32 v7, v7, v8\ns_lshl_b32 s82, {s(sW)}, 7\ns_add_u32 s82, s82, {L_ST + 1024}\nv_add_u32 v7, s82, v7")
        e(f"s_lshl_b32 s82, {s(sCl)}, 3\ns_add_u32 s82, s82, {s(sJ)}\ns_lshl_b32 s82, s82, 10\ns_lshl_b32 s83, {s(sW)}, 8\ns_add_u32 s82, s82, s83\ns_add_u32 s84, s82, {WS_ST2}")
        e(f"v_lshlrev_b32 v8, 4, {v(vRho)}")
        e.barrier()
        t = e.ds(f"ds_read_b64 {v(SS,2)}, v7")
        e.wait_lg(t)
        self.allreduce_g2(SS, SS+1, 5, 6, "add")
        e(f"v_mov_b32 {v(SS+2)}, {v(SS+1)}\nv_mov_b32 {v(SS+1)}, {s(sN)}\nv_mov_b32 {v(SS+3)}, {s(sN)}")
        e("s_mov_b32 exec_lo, 0xffff\ns_mov_b32 exec_hi, 0")
        e(f"buffer_store_dwordx4 {v(SS,4)}, v8, {srd(SWS)}, s84 offen sc1")
        e("s_mov_b64 exec, -1")

    def p4_z1_pack(self):
        e = self.e
        for tl in range(2):
            for tt in range(4):
                X = self.A1 + (tl*4+tt)*4
                P = self.Z1P + (tl*4+tt)*2
                e(f"v_cvt_pk_bf16_f32 {v(P)}, {v(X)}, {v(X+1)}\nv_cvt_pk_bf16_f32 {v(P+1)}, {v(X+2)}, {v(X+3)}")
        e(f"s_lshl_b32 s82, {s(sW)}, 12\ns_add_u32 s82, s82, {L_TR}\nv_add_u32 v7, s82, {v(vL16)}")
        for k in range(4): e(f"ds_write_b128 v7, {v(self.Z1P+4*k,4)} offset:{k*1024}")
        e.wait_lg(e.tlg())

    def p4_z2_publish(self):
        e = self.e
        e(f"v_lshlrev_b32 v7, 11, {v(vG)}\nv_lshlrev_b32 v8, 4, {v(vRho)}\nv_add_u32 v204, v7, v8")
        e(f"s_lshl_b32 s82, {s(sCl)}, 13\ns_lshl_b32 s83, {s(sW)}, 8\ns_add_u32 s82, s82, s83\ns_add_u32 s64, s82, {WS_ST2}")
        self.poll([(208, 4, 204, "s64", 0), (212, 4, 204, "s64", 1024)], [(209, None), (211, None), (213, None), (215, None)], stem="st2")
        self.stamp("st2poll")
        e("v_add_f32 v208, v208, v212\nv_add_f32 v209, v210, v214")
        self.allreduce_g2(208, 209, 5, 6, "add")
        self.stats_finish(208, 209, 896, 210, "nmr")
        e(f"s_lshl_b32 s82, {s(sW)}, 7\ns_add_u32 s82, s82, {L_ST + 512}\nv_lshlrev_b32 v7, 3, {v(vRho)}\nv_add_u32 v7, s82, v7")
        e("ds_write_b64 v7, v[210:211]")
        e(f"s_lshl_b32 s82, {s(sW)}, 12\ns_add_u32 s82, s82, {L_TR}")
        e(f"v_lshrrev_b32 v8, 2, {v(vRho)}\nv_xor_b32 v8, v8, {v(vG)}\nv_lshlrev_b32 v8, 3, v8\nv_lshlrev_b32 v9, 5, {v(vRho)}\nv_add_u32 v8, v8, v9\nv_add_u32 v8, s82, v8")
        e(f"v_lshrrev_b32 v9, 2, {v(vRho)}\nv_lshlrev_b32 v10, 2, {v(vG)}\nv_add_u32 v9, v9, v10\nv_lshlrev_b32 v9, 5, v9\nv_and_b32 v10, 3, {v(vRho)}\nv_xor_b32 v10, v10, {v(vG)}\nv_lshlrev_b32 v10, 3, v10\nv_add_u32 v9, v9, v10\nv_add_u32 v9, s82, v9")
        e(f"v_lshlrev_b32 v7, 3, {v(vRho)}\nv_add_u32 v7, {L_ST + 512}, v7")
        e.barrier()
        tks = [e.ds(f"ds_read_b64 {v(self.ST2R+2*tt,2)}, v7 offset:{tt*128}") for tt in range(4)]
        P = 208
        for tt in range(4):
            e.wait_lg(tks[tt])
            for tl in range(2):
                X = self.A2 + (tl*4+tt)*4
                st = v(self.ST2R + 2*tt, 2)
                for q in range(2):
                    e(f"v_pk_fma_f32 {v(X+2*q,2)}, {v(X+2*q,2)}, {st}, {st} op_sel:[0,0,1] op_sel_hi:[1,0,1]")
                p = P + 2*((tt*2+tl) % 4)
                e(f"v_cvt_pk_bf16_f32 {v(p)}, {v(X)}, {v(X+1)}\nv_cvt_pk_bf16_f32 {v(p+1)}, {v(X+2)}, {v(X+3)}")
                e(f"ds_write_b64 v8, {v(p,2)} offset:{(tl*4+tt)*512}")
        FR = 80
        e.wait_lg(e.tlg())
        tk = {}
        for tl in range(2):
            for b in range(2):
                for tau in range(2):
                    tk[tl, b] = e.ds(f"ds_read_b64_tr_b16 {v(FR + (tl*2+b)*4 + 2*tau, 2)}, v9 offset:{(tl*4 + 2*b + tau)*512}")
        for tl in range(2):
            e(f"s_lshl_b32 s82, {s(sJ)}, 6\ns_lshl_b32 s83, {s(sCl)}, 1\ns_add_u32 s82, s82, s83\ns_mul_i32 s82, s82, 7\ns_lshl_b32 s83, {s(sW)}, 1\ns_add_u32 s83, s83, {tl}\ns_add_u32 s82, s82, s83")
            e(f"s_lshl_b32 s82, s82, 10\ns_add_u32 s82, s82, {WS_Z}\ns_cmp_lt_u32 s83, 7\ns_cselect_b32 s82, s82, {OOB}\ns_add_u32 s84, s82, 7168")
            e.wait_lg(tk[tl, 0])
            e(f"buffer_store_dwordx4 {v(FR + (tl*2)*4, 4)}, {v(vL16)}, {srd(SWS)}, s82 offen sc1")
            e.wait_lg(tk[tl, 1])
            e(f"buffer_store_dwordx4 {v(FR + (tl*2+1)*4, 4)}, {v(vL16)}, {srd(SWS)}, s84 offen sc1")
        e(f"s_lshl_b32 s82, {s(sJ)}, 7\ns_lshl_b32 s83, {s(sCl)}, 2\ns_add_u32 s66, s82, s83\ns_add_u32 s66, s66, {WS_F5}")
        e(f"s_lshl_b32 s83, {s(sW)}, 5\ns_add_u32 s62, s82, s83\ns_add_u32 s62, s62, {WS_F5}")
        self.publish("s66")

    A5, ZR, BSP, ZD = 16, 128, 240, 4
    Z1R = 144
    def wa(self, st): return (128 + 16*st) % 256
    def wsp_setup(self):
        e = self.e
        e(f"v_lshrrev_b32 v7, 5, {v(vLane)}\nv_lshlrev_b32 v7, 3, v7\nv_bfe_u32 v8, {v(vLane)}, 3, 2\nv_add_u32 v7, v7, v8\nv_lshlrev_b32 v7, 12, v7")
        e(f"v_and_b32 v12, 7, {v(vLane)}\nv_xor_b32 v12, v12, {v(vG)}\nv_xor_b32 v13, 4, v12\nv_lshlrev_b32 v12, 4, v12\nv_lshlrev_b32 v13, 4, v13")
        e("v_add_u32 v12, v7, v12\nv_add_u32 v13, v7, v13")
        e(f"s_lshl_b32 s72, {s(sCl)}, 18\ns_lshl_b32 s82, {s(sW)}, 10\ns_add_u32 s72, s72, s82")
        e(f"s_lshl_b32 s73, {s(sW)}, 13\ns_add_u32 s73, s73, {L_WSP}")
        e(f"v_lshrrev_b32 v14, 1, {v(vRho)}\nv_xor_b32 v14, v14, {v(vG)}\nv_xor_b32 v15, 4, v14\nv_lshlrev_b32 v14, 4, v14\nv_lshlrev_b32 v15, 4, v15")
        e(f"v_lshlrev_b32 v7, 7, {v(vRho)}\nv_add_u32 v14, v14, v7\nv_add_u32 v15, v15, v7\nv_add_u32 v14, s73, v14\nv_add_u32 v15, s73, v15")

    def wsp_bg(self, b, slot):
        e = self.e
        for rg in range(8):
            row = 32*(rg >> 2) + 16*(rg & 1) + 4*((rg >> 1) & 1)
            e.bg_add(("wsp", b), f"s_add_u32 m0, s73, {slot*32768 + rg*1024}\ns_add_u32 s81, s72, {row*4096 + 128*b}\nbuffer_load_dwordx4 {v(12 + (rg & 1))}, {srd(SWSP)}, s81 offen lds")

    def wsp_park(self, b, slot):
        e = self.e
        e.wait_bg(("wsp", b))
        t = None
        for sp in range(2):
            if slot >= 2: e(f"v_add_u32 v7, 65536, {v(14+sp)}")
            for tt in range(4):
                t = e.ds(f"ds_read_b128 {a(self.wa(2*b+sp) + 4*tt, 4)}, {v(7 if slot >= 2 else 14+sp)} offset:{(slot & 1)*32768 + tt*2048}")
        return t

    def bsp_loads(self):
        e = self.e
        e(f"v_lshrrev_b32 v6, 2, {v(vRho)}\nv_lshlrev_b32 v6, 3, v6\nv_and_b32 v7, 3, {v(vRho)}\nv_add_u32 v6, v6, v7\nv_lshlrev_b32 v6, 1, v6")
        e(f"s_lshl_b32 s82, {s(sCl)}, 7")
        for tt in range(4):
            e(f"buffer_load_ushort {v(self.BSP+tt)}, v6, {srd(SBSP)}, s82 offen offset:{2*(32*(tt>>1) + 4*(tt&1))}")

    def p5_main(self):
        e = self.e
        ZD = self.ZD
        e(f"s_lshl_b32 s82, {s(sJ)}, 6\ns_lshl_b32 s83, {s(sW)}, 4\ns_add_u32 s82, s82, s83\ns_mul_i32 s74, s82, 7168\ns_add_u32 s74, s74, {WS_Z}")
        self.spoll("s62", "f5")
        self.stamp("f5poll")
        tz = {}
        def zgroups(st):
            out = []
            for t in range(7):
                pre = f"s_add_u32 s82, s74, {st*7168}\n" if t == 0 else (f"s_add_u32 s82, s74, {st*7168 + 4096}\n" if t == 4 else "")
                out.append(pre + f"buffer_load_dwordx4 {v(self.ZR + ((st % ZD)*7 + t)*4, 4)}, {v(vL16)}, {srd(SWS)}, s82 offen offset:{(t & 3)*1024} sc1")
            return out
        for st in range(ZD - 1):
            for g in zgroups(st): e(g)
            tz[st] = e.tvm()
        for st in range(16):
            zs = zgroups(st + ZD - 1) if st + ZD - 1 < 16 else []
            e.wait_vm(tz[st])
            if st == 8: e.wait_lg(e.tlg())
            k = 0
            for t in range(7):
                for tt in range(4):
                    D = v(self.A5 + (t*4+tt)*4, 4)
                    e(f"{MF} {D}, {v(self.ZR + ((st % ZD)*7 + t)*4, 4)}, {a(self.wa(st) + 4*tt, 4)}, {D if st else 0}")
                    k += 1
                    if k % 4 == 1 and zs: e(zs.pop(0))
                    if k % 14 == 0: e.tick()
            if st + ZD - 1 < 16: tz[st + ZD - 1] = e.tvm()
            if st == 2: self.wsp_park(4, 2); self.wsp_park(5, 3)
            if st == 5: self.wsp_park(6, 0); self.wsp_park(7, 1)

    def wout_bg(self):
        e = self.e
        e(f"s_mul_i32 s75, {s(sJ)}, 114688\ns_mul_i32 s83, {s(sW)}, 28672\ns_add_u32 s75, s75, s83\ns_add_u32 s75, s75, {WS_WOUT}")
        for k in range(7):
            for ft in range(4):
                e.bg_add("wout", f"s_add_u32 s81, s75, {k*4096}\nbuffer_load_dwordx4 {a((k*4+ft)*4, 4)}, {v(vL16)}, {srd(SWS)}, s81 offen offset:{ft*1024} sc1")

    def p5_epilogue(self):
        e = self.e
        e.barrier()
        e(f"s_mul_i32 s82, {s(sW)}, 28672\ns_add_u32 s82, s82, {L_RED}\nv_add_u32 v7, s82, {v(vL16)}")
        for k in range(28):
            e(f"ds_write_b128 v7, {v(self.A5 + 4*k, 4)} offset:{k*1024}")
        e(f"s_lshl_b32 s82, {s(sW)}, 12\ns_add_u32 s82, s82, {L_TR}\nv_add_u32 v8, s82, {v(vL16)}")
        for k in range(4): e(f"ds_read_b128 {v(self.Z1R+4*k,4)}, v8 offset:{k*1024}")
        e(f"s_lshl_b32 s82, {s(sW)}, 13\ns_add_u32 s82, s82, {L_RED}\nv_add_u32 v7, s82, {v(vL16)}\nv_add_u32 v8, 57344, v7")
        for tt in range(4): e(f"v_lshlrev_b32 {v(self.BSP+tt)}, 16, {v(self.BSP+tt)}")
        e(f"v_and_b32 v9, 1, {v(vG)}\nv_mul_u32_u24 v9, 28672, v9\nv_lshrrev_b32 v10, 1, {v(vG)}\nv_lshlrev_b32 v10, 8, v10\nv_add_u32 v9, v9, v10\nv_lshlrev_b32 v10, 4, {v(vRho)}\nv_add_u32 v9, v9, v10")
        e.barrier()
        R = 16
        tk = {}
        def rd(idx):
            for src in range(4):
                tk[idx] = e.ds(f"ds_read_b128 {v(R + (idx*4+src)*4, 4)}, {v(7 + (src >> 1))} offset:{(src & 1)*28672 + idx*1024}")
        order = [tl*4 + tt for tl in range(2) for tt in range(4)]
        for idx in order[:3]: rd(idx)
        Q = 216
        for n, idx in enumerate(order):
            tl, tt = idx >> 2, idx & 3
            if n + 3 < 8: rd(order[n+3])
            e.wait_lg(tk[idx])
            r = R + idx*16
            for q in range(2): e(f"v_pk_add_f32 {v(r+2*q,2)}, {v(r+2*q,2)}, {v(r+4+2*q,2)}\nv_pk_add_f32 {v(r+8+2*q,2)}, {v(r+8+2*q,2)}, {v(r+12+2*q,2)}")
            for q in range(2): e(f"v_pk_add_f32 {v(r+2*q,2)}, {v(r+2*q,2)}, {v(r+8+2*q,2)}")
            for q in range(2):
                z = self.Z1R + idx*2 + q
                e(f"v_lshlrev_b32 {v(r+4+2*q)}, 16, {v(z)}\nv_and_b32 {v(r+5+2*q)}, {s(sHI)}, {v(z)}")
            for k in range(4): e(f"v_add_f32 {v(r+k)}, {v(r+k)}, {v(self.BSP+tt)}")
            for q in range(2): e(f"v_pk_mul_f32 {v(r+2*q,2)}, {v(r+2*q,2)}, {v(r+4+2*q,2)}")
            for q in range(2): e(f"v_cvt_pk_bf16_f32 {v(Q + (tl*2 + (tt >> 1))*4 + 2*(tt & 1) + q)}, {v(r+2*q)}, {v(r+2*q+1)}")
            if tt & 1:
                b = tt >> 1
                if b == 0:
                    e(f"s_lshl_b32 s83, {s(sW)}, 1\ns_add_u32 s83, s83, {tl}\ns_mul_i32 s84, {s(sJ)}, 14\ns_lshl_b32 s85, s83, 1\ns_add_u32 s84, s84, s85\ns_lshl_b32 s84, s84, 8")
                    e(f"s_lshl_b32 s85, {s(sCl)}, 2\ns_mul_i32 s85, s85, 28672\ns_add_u32 s84, s84, s85\ns_add_u32 s84, s84, {WS_G}\ns_cmp_lt_u32 s83, 7\ns_cselect_b32 s84, s84, {OOB}\ns_add_u32 s85, s84, 57344")
                q = Q + (tl*2+b)*4
                e(f"v_permlane16_swap_b32 {v(q)}, {v(q+2)}\nv_permlane16_swap_b32 {v(q+1)}, {v(q+3)}")
                e(f"buffer_store_dwordx4 {v(q,4)}, v9, {srd(SWS)}, {('s84','s85')[b]} offen sc1")
        e(f"s_lshl_b32 s82, {s(sCl)}, 7\ns_add_u32 s62, s82, {WS_F6}\ns_lshl_b32 s83, {s(sJ)}, 2\ns_add_u32 s66, s62, s83")
        self.publish("s66", pre=12, post=16)

    def p6(self):
        e = self.e
        GF, ACC = 16, 128
        e(f"s_lshl_b32 s82, {s(sCl)}, 2\ns_mul_i32 s82, s82, 28672\ns_mul_i32 s83, {s(sW)}, 7168\ns_add_u32 s82, s82, s83\ns_add_u32 s82, s82, {WS_G}")
        for tt in range(4): e(f"s_add_u32 {s(76+tt)}, s82, {tt*28672}")
        GB = 192
        e(f"v_lshlrev_b32 v8, 4, {v(vG)}\ns_mul_i32 s82, {s(sJ)}, 112\ns_add_u32 s82, s82, {L_M + 2688}\nv_add_u32 v8, s82, v8")
        e(f"ds_read_b128 {v(GB,4)}, v8\nds_read_b128 {v(GB+4,4)}, v8 offset:64")
        self.row_offset(9)
        self.spoll("s62", "f6")
        self.stamp("f6poll")
        tg = {}
        for k in range(7):
            for tt in range(4):
                if k == 4: e(f"s_add_u32 {s(76+tt)}, {s(76+tt)}, 4096")
                tg[k] = e.vm(f"buffer_load_dwordx4 {v(GF + (k*4+tt)*4, 4)}, {v(vL16)}, {srd(SWS)}, {s(76+tt)} offen offset:{(k & 3)*1024} sc1")
        XU, GU = 200, 216
        for k in range(8):
            e(f"v_lshlrev_b32 {v(XU+2*k)}, 16, {v(self.X1+k)}\nv_and_b32 {v(XU+2*k+1)}, {s(sHI)}, {v(self.X1+k)}")
            e(f"v_lshlrev_b32 {v(GU+2*k)}, 16, {v(GB+k)}\nv_and_b32 {v(GU+2*k+1)}, {s(sHI)}, {v(GB+k)}")
        for k in range(7):
            e.wait_vm(tg[k])
            for ft in range(4):
                for tt in range(4):
                    D = v(ACC + (ft*4+tt)*4, 4)
                    e(f"{MF} {D}, {a((k*4+ft)*4, 4)}, {v(GF + (k*4+tt)*4, 4)}, {D if k else 0}")
        self.stamp("p6gemm")
        e(f"s_lshl_b32 s82, {s(sW)}, 14\ns_add_u32 s82, s82, {L_RED}\nv_add_u32 v7, s82, {v(vL16)}")
        for k in range(16): e(f"ds_write_b128 v7, {v(ACC + 4*k, 4)} offset:{k*1024}")
        e(f"s_lshl_b32 s82, {s(sW)}, 10\ns_add_u32 s82, s82, {L_RED}\nv_add_u32 v7, s82, {v(vL16)}")
        e.barrier()
        R = 16
        tk = {}
        for ft in range(4):
            for src in range(4):
                tk[ft] = e.ds(f"ds_read_b128 {v(R + (ft*4+src)*4, 4)}, v7 offset:{src*16384 + ft*4096}")
        OP = 112
        for ft in range(4):
            e.wait_lg(tk[ft])
            r = R + ft*16
            for q in range(2): e(f"v_pk_add_f32 {v(r+2*q,2)}, {v(r+2*q,2)}, {v(r+4+2*q,2)}\nv_pk_add_f32 {v(r+8+2*q,2)}, {v(r+8+2*q,2)}, {v(r+12+2*q,2)}")
            for q in range(2): e(f"v_pk_add_f32 {v(r+2*q,2)}, {v(r+2*q,2)}, {v(r+8+2*q,2)}")
            for q in range(2):
                k = 2*ft + q
                e(f"v_pk_fma_f32 {v(r+2*q,2)}, {v(GU+2*k,2)}, {v(r+2*q,2)}, {v(XU+2*k,2)}")
            for q in range(2): e(f"v_cvt_pk_bf16_f32 {v(OP+2*ft+q)}, {v(r+2*q)}, {v(r+2*q+1)}")
            if ft == 1: e(f"buffer_store_dwordx4 {v(OP,4)}, v9, {srd(SOUT)}, s67 offen")
        e("s_mov_b32 exec_hi, 0x0000ffff")
        e(f"buffer_store_dwordx4 {v(OP+4,4)}, v9, {srd(SOUT)}, s67 offen offset:64")
        e("s_mov_b32 exec_hi, -1")
        self.stamp("end")
        self.stamps_out()
        e(f"s_add_u32 s82, s2, {s(sW)}\ns_cmp_eq_u32 s82, 0\ns_cbranch_scc0 L_end")
        e(f"v_mov_b32 v5, {s(sN)}\ns_mov_b64 exec, 1\nbuffer_store_dword v5, off, {srd(SWS)}, 0 sc1")

    def build(self):
        e = self.e
        S = self.stamp
        self.prologue()
        S("start")
        self.gemv_loads()
        t0 = e.tvm()
        self.x_dma()
        self.prepass_issue()
        t_pp = e.tvm()
        self.wqkv_setup()
        self.wqkv_bg(1, L_K, "wk")
        e.bg_flush()
        n_common = e.tvm() - t0
        S("issued")
        self.nonce(n_common)
        self.gemv_compute(n_common)
        S("gemv")
        t_pps = self.prepass_finish(t_pp)
        self.wqkv_bg(2, L_V, "wv")
        e.wait_vm(self.t_x)
        e.barrier()
        S("xland")
        self.ln1()
        self.prepass_flag(t_pps)
        S("ln1a")
        self.ln1_finish()
        e.bg_flush()
        S("ln1")
        self.mod_wait1()
        e.wait_bg("wk")
        e.barrier()
        S("modpoll")
        self.wqkv_bg(0, L_X, "wq")
        self.modulate()
        S("modulate")
        self.kvq_setup()
        acc = self.qkv_gemm("k", L_K)
        e.wait_bg("wv")
        e.barrier()
        self.k_epilogue(acc)
        S("kgemm")
        t_late = self.late_loads()
        acc = self.qkv_gemm("v", L_V)
        e.wait_bg("wq")
        e.barrier()
        self.v_epilogue(acc)
        t_vst = e.tvm()
        S("vgemm")
        acc = self.qkv_gemm("q", L_X)
        e.wait_vm(t_vst)
        self.flag_store("s61")
        self.late_check(t_late)
        self.q_epilogue(acc)
        S("qgemm")
        e.barrier()
        self.wo_bg()
        self.xslice_bg()
        e.bg_flush()
        self.att_bias()
        e("s_sub_u32 s62, s61, 32")
        self.spoll("s62", "f1", blk="s59")
        S("kpoll")
        self.att_offsets()
        for key, txt in self.att_load_groups(0, 0, "k"):
            e.bg_add(key, txt); e.tick()
        for key, txt in self.att_load_groups(64, 2048, "v"): e.bg_add(key, txt)
        self.att_scores()
        S("scores")
        self.att_softmax_pv(0)
        S("softmax")
        self.win_bg(1, 77)
        self.att_epilogue()
        S("opub")
        if self.end_if_stop("o"): return
        e.bg_flush()
        self.win_bg(0, 77)
        self.wsp_setup()
        self.wsp_bg(0, 0); self.wsp_bg(1, 1)
        bgq, e.bgq = e.bgq, []
        self.p3(bgq)
        S("ypub")
        if self.end_if_stop("y"): return
        e.bg_flush()
        self.gelu_consts()
        self.p4_head()
        S("p4head")
        self.p4_gemm(1, 0)
        S("z2gemm")
        self.wsp_park(0, 0); t = self.wsp_park(1, 1)
        self.p4_act(1, tick=False)
        S("z2act")
        self.p4_z2_stats()
        S("z2stats")
        e.wait_lg(t)
        self.wsp_bg(2, 0); self.wsp_bg(3, 1)
        self.uv_mfmas(0)
        self.p4_gemm(0, 6)
        self.uv_extract(0)
        e.bg_flush()
        S("z1gemm")
        self.wsp_park(2, 0); t = self.wsp_park(3, 1)
        self.p4_z2_publish()
        S("zpub")
        if self.end_if_stop("z"): return
        self.wsp_bg(4, 2); self.wsp_bg(5, 3); self.wsp_bg(6, 0); self.wsp_bg(7, 1)
        self.p4_act(0)
        self.p4_z1_pack()
        self.bsp_loads()
        S("z1act")
        self.p5_main()
        S("p5main")
        self.wout_bg()
        self.p5_epilogue()
        S("gpub")
        if self.end_if_stop("g"): return
        e.bg_flush()
        self.p6()

    def text(self):
        self.build()
        body = self.e.text()
        hdr = open(os.path.join(os.path.dirname(os.path.abspath(__file__)), "header.txt")).read()
        return hdr + f"""; @launch grid=(256,1,1) block=(256,1,1) lds={LDS_BYTES}
.amdgcn_target "amdgcn-amd-amdhsa--gfx950"
.text
.globl {NAME}
.p2align 8
.type {NAME},@function
{NAME}:
{body}L_end:
  s_endpgm
.section .rodata,"a"
.p2align 6
.amdhsa_kernel {NAME}
  .amdhsa_next_free_vgpr 512
  .amdhsa_next_free_sgpr 102
  .amdhsa_accum_offset 256
  .amdhsa_group_segment_fixed_size 0
  .amdhsa_kernarg_size 104
  .amdhsa_user_sgpr_count 2
  .amdhsa_user_sgpr_kernarg_segment_ptr 1
  .amdhsa_system_sgpr_workgroup_id_x 1
.end_amdhsa_kernel
"""

if __name__ == "__main__":
    stop = sys.argv[2] if len(sys.argv) > 2 and sys.argv[2] != "-" else None
    opts = dict(kv.split("=") if "=" in kv else (kv, 1) for kv in sys.argv[3:])
    g = Gen(stop=stop, opts=opts)
    open(sys.argv[1], "w").write(g.text())
    if opts.get("prof"): open(sys.argv[1] + ".stamps", "w").write(" ".join(g.stamps))
```

```python
import sys, struct, os
sys.path.insert(0, os.path.dirname(os.path.abspath(__file__)))
from emit import *
from layout import *

NAME = "adaLN_cond__sliding_block__mixer_gmlp__prompt_kernel"

DBG, SX, SWQKV, SWO, SWIN, SWSP, SBSP, SWOUT, SC, SWMOD, SOUT, SWS = 4, 8, 12, 16, 20, 24, 28, 32, 36, 40, 44, 48
sW, sCl, sJ, sN = 52, 53, 54, 55
sEX = 56
sHI = 100
sTO = 101
vLane, vL16, vRho, vG = 1, 2, 3, 4

def srd(r): return s(r, 4)
def fbits(x): return struct.unpack("<I", struct.pack("<f", x))[0]
def lit(x): return hex(fbits(x))
MF = "v_mfma_f32_16x16x32_bf16"
POLL_MAX = 1 << 17

class Gen:
    def __init__(self, stop=None, opts=None):
        self.e = E()
        self.stop = stop
        self.o = opts or {}
        self.stamps = []

    def stamp(self, name):
        if not self.o.get("prof"): return
        only = self.o.get("only")
        if only and name not in only.split("+") + ["start", "end"]: return
        e = self.e
        k = len(self.stamps); self.stamps.append(name)
        if self.o.get("prof") == "cyc": e("s_memtime s[92:93]\ns_waitcnt lgkmcnt(0)")
        else: e("s_memrealtime s[92:93]\ns_waitcnt lgkmcnt(0)")
        e(f"v_writelane_b32 v0, s92, {k}")

    def stamps_out(self):
        if not self.o.get("prof"): return
        e = self.e
        e(f"s_lshl_b32 s90, s2, 2\ns_add_u32 s90, s90, {s(sW)}\ns_lshl_b32 s90, s90, 8\ns_add_u32 s90, s90, {WS_DBG}")
        e(f"v_lshlrev_b32 v5, 2, {v(vLane)}")
        e(f"buffer_store_dword v0, v5, {srd(SWS)}, s90 offen")
        if self.o.get("dbgout"):
            L = e.label("dbgout")
            e(f"s_cmp_eq_u32 s2, {self.o['dbgout']}\ns_cbranch_scc0 {L}\ns_cmp_eq_u32 {s(sW)}, 0\ns_cbranch_scc0 {L}")
            e(f"v_readlane_b32 s90, v0, 0\nv_subrev_u32 v6, s90, v0\ns_mov_b32 exec_lo, 0xffff\ns_mov_b32 exec_hi, 0")
            e(f"buffer_store_dword v6, v5, {srd(DBG)}, 0 offen\ns_mov_b64 exec, -1")
            e(f"{L}:")

    def end_if_stop(self, name):
        if self.stop == name:
            self.e.bg_flush()
            self.e("s_waitcnt vmcnt(0) lgkmcnt(0)\ns_branch L_end")
            return True
        return False

    def timeout_mark(self):
        e = self.e
        e(f"v_mov_b32 v5, {e.nlabel}\nv_mov_b32 v6, 0")
        e(f"buffer_store_dword v5, v6, {srd(DBG)}, 0 offen")

    def poll(self, loads, checks, stem="poll"):
        e = self.e
        L, Lok = e.label(stem), e.label(stem + "ok")
        fixed = []
        k = 0
        for vd, n, va, so, off in loads:
            if isinstance(so, int):
                e(f"s_mov_b32 {s(92+k)}, {so}"); so = s(92+k); k += 1
            fixed.append((vd, n, va, so, off))
        assert k <= 4
        e(f"s_mov_b32 {s(sTO)}, 0")
        e(f"{L}:")
        st = e.snap()
        for vd, n, va, so, off in fixed:
            op = {1: "buffer_load_dword", 2: "buffer_load_dwordx2", 4: "buffer_load_dwordx4"}[n]
            e(f"{op} {v(vd, n)}, {v(va)}, {srd(SWS)}, {so} offen offset:{off} sc1")
        e("s_waitcnt vmcnt(0)")
        self.tags_differ([c for c, _ in checks])
        e(f"s_cmp_eq_u64 vcc, 0\ns_cbranch_scc1 {Lok}")
        e(f"s_add_u32 {s(sTO)}, {s(sTO)}, 1\ns_cmp_lt_u32 {s(sTO)}, {POLL_MAX}\ns_cbranch_scc1 {L}")
        self.timeout_mark()
        e(f"{Lok}:")
        e.restore(st)
        e.vm_done = e.vm_issued

    def tags_differ(self, regs):
        e = self.e
        for r in regs: e(f"v_xor_b32 {v(r)}, {s(sN)}, {v(r)}")
        acc, rest = regs[0], regs[1:]
        while rest:
            if len(rest) >= 2:
                e(f"v_or3_b32 {v(acc)}, {v(acc)}, {v(rest[0])}, {v(rest[1])}"); rest = rest[2:]
            else:
                e(f"v_or_b32 {v(acc)}, {v(acc)}, {v(rest[0])}"); rest = rest[1:]
        e(f"v_cmp_ne_u32 vcc, 0, {v(acc)}")

    def spoll(self, soff, stem, blk=None, fast=False):
        e = self.e
        if stem in self.o.get("vpoll", "").split("+"):
            return self.vpoll8(soff, stem, fast and self.o.get("fast"), blk)
        fast = fast and self.o.get("fast")
        L, Lok = e.label(stem), e.label(stem + "ok")
        e(f"s_add_u32 s96, {s(SWS)}, {soff}\ns_addc_u32 s97, {s(SWS+1)}, 0")
        e(f"s_mov_b32 s98, {s(sN)}\ns_mov_b32 s99, {s(sN)}\ns_mov_b32 {s(sTO)}, 0")
        e(f"{L}:")
        e("s_load_dwordx8 s[84:91], s[96:97], 0 glc")
        if fast: e(f"s_load_dwordx8 s[12:19], s[96:97], {WS_FAST - WS_F2} glc")
        e("s_waitcnt lgkmcnt(0)")
        for k in range(4): e(f"s_xor_b64 s[{84+2*k}:{85+2*k}], s[{84+2*k}:{85+2*k}], s[98:99]")
        if fast:
            for k in range(4): e(f"s_xor_b64 s[{12+2*k}:{13+2*k}], s[{12+2*k}:{13+2*k}], s[98:99]")
            for i in range(8): e(f"s_min_u32 {s(84+i)}, {s(84+i)}, {s(12+i)}")
        if blk:
            for i in range(8): e(f"s_add_u32 s82, {blk}, {i}\ns_cmp_ge_u32 s82, 8\ns_cselect_b32 {s(84+i)}, {s(84+i)}, 0")
        e("s_or_b64 s[84:85], s[84:85], s[86:87]\ns_or_b64 s[88:89], s[88:89], s[90:91]\ns_or_b64 s[84:85], s[84:85], s[88:89]")
        e(f"s_cmp_eq_u64 s[84:85], 0\ns_cbranch_scc1 {Lok}")
        e(f"s_add_u32 {s(sTO)}, {s(sTO)}, 1\ns_cmp_lt_u32 {s(sTO)}, {POLL_MAX}\ns_cbranch_scc1 {L}")
        st = e.snap()
        self.timeout_mark()
        e.restore(st)
        e(f"{Lok}:")

    def vpoll8(self, soff, stem, fast, blk=None):
        e = self.e
        L, Lok = e.label(stem), e.label(stem + "ok")
        one = stem in self.o.get("onepoll", "").split("+")
        if one: e(f"s_cmp_eq_u32 {s(sW)}, 3\ns_cbranch_scc0 {Lok}")
        e(f"v_and_b32 v5, 7, {v(vLane)}\nv_lshlrev_b32 v11, 2, v5")
        if fast: e(f"v_bfe_u32 v6, {v(vLane)}, 3, 1\nv_mul_u32_u24 v6, {WS_FAST - WS_F2}, v6\nv_add_u32 v11, v11, v6")
        if blk: e(f"s_sub_u32 s83, 8, {blk}\ns_max_i32 s83, s83, 0\ns_lshl_b32 s83, 1, s83\ns_sub_u32 s83, s83, 1")
        e(f"s_mov_b32 {s(sTO)}, 0")
        e(f"{L}:")
        st = e.snap()
        e(f"buffer_load_dword v10, v11, {srd(SWS)}, {soff} offen sc1\ns_waitcnt vmcnt(0)")
        e(f"v_cmp_eq_u32 vcc, {s(sN)}, v10")
        if fast: e(f"s_lshr_b32 s82, vcc_lo, 8\ns_or_b32 s82, s82, vcc_lo")
        else: e(f"s_mov_b32 s82, vcc_lo")
        if blk: e("s_or_b32 s82, s82, s83")
        e(f"s_and_b32 s82, s82, 0xff\ns_cmp_eq_u32 s82, 0xff\ns_cbranch_scc1 {Lok}")
        e(f"s_add_u32 {s(sTO)}, {s(sTO)}, 1\ns_cmp_lt_u32 {s(sTO)}, {POLL_MAX}\ns_cbranch_scc1 {L}")
        self.timeout_mark()
        e(f"{Lok}:")
        e.restore(st)
        if one: e("s_barrier")
        else: e.vm_done = e.vm_issued

    def flag_store(self, soff):
        e = self.e
        e(f"v_mov_b32 v5, {s(sN)}\ns_mov_b64 exec, 1")
        e(f"buffer_store_dword v5, off, {srd(SWS)}, {soff} sc1")
        e("s_mov_b64 exec, -1")

    def publish(self, soff, pre=0, post=0, name=None, fast=True):
        e = self.e
        t = e.tvm()
        if name: self.stamp(name + "_st")
        e.tick(pre)
        e.wait_vm(t)
        if name: self.stamp(name + "_dr")
        e.barrier()
        L = e.label("pub")
        st = e.snap()
        e(f"s_cmp_eq_u32 {s(sW)}, 0\ns_cbranch_scc0 {L}")
        if fast and self.o.get("fast"):
            e(f"s_add_u32 s82, {soff}, {WS_FAST - WS_F2}\nv_mov_b32 v5, {s(sN)}\ns_mov_b64 exec, 1")
            e(f"buffer_store_dword v5, off, {srd(SWS)}, s82")
            e(f"buffer_store_dword v5, off, {srd(SWS)}, {soff} sc1\ns_mov_b64 exec, -1")
        else:
            self.flag_store(soff)
        e(f"{L}:")
        e.restore(st)
        if name: self.stamp(name + "_fl")
        e.tick(post)

    def allreduce_g(self, r, tmp, op):
        e = self.e
        o = {"add": "v_add_f32", "max": "v_max_f32"}[op]
        e(f"v_mov_b32 {v(tmp)}, {v(r)}\nv_permlane32_swap_b32 {v(r)}, {v(tmp)}\n{o} {v(r)}, {v(r)}, {v(tmp)}")
        e(f"v_mov_b32 {v(tmp)}, {v(r)}\nv_permlane16_swap_b32 {v(r)}, {v(tmp)}\n{o} {v(r)}, {v(r)}, {v(tmp)}")

    def allreduce_g2(self, r0, r1, t0, t1, op):
        e = self.e
        o = {"add": "v_add_f32", "max": "v_max_f32"}[op]
        for sw in ("v_permlane32_swap_b32", "v_permlane16_swap_b32"):
            e(f"v_mov_b32 {v(t0)}, {v(r0)}\nv_mov_b32 {v(t1)}, {v(r1)}\n{sw} {v(r0)}, {v(t0)}\n{sw} {v(r1)}, {v(t1)}")
            e(f"{o} {v(r0)}, {v(r0)}, {v(t0)}\n{o} {v(r1)}, {v(r1)}, {v(t1)}")

    def gemm_loop(self, nsteps, reads, mfmas, depth=2, pre=None, tick_every=0, tick_max=10**9, first=0):
        e = self.e
        tk = {}
        for st in range(first, min(first + depth, nsteps)):
            for r in reads(st): tk[st] = e.ds(r)
        k = 0
        for st in range(first, nsteps):
            pend = list(reads(st + depth)) if st + depth < nsteps else []
            if pre: pre(st)
            e.wait_lg(tk.get(st))
            ms = mfmas(st)
            for n, m in enumerate(ms):
                e(m); k += 1
                if pend and (len(pend) >= len(ms) - n or n % max(1, len(ms) // max(1, len(reads(st + depth)))) == 0):
                    tk[st + depth] = e.ds(pend.pop(0))
                elif tick_every and k % tick_every == 0 and tick_max > 0 and e.bg_left():
                    e.tick(); tick_max -= 1
            for r in pend: tk[st + depth] = e.ds(r)

    def prologue(self):
        e = self.e
        e("s_cmp_ge_u32 s2, 256\ns_cbranch_scc1 L_end")
        e("s_load_dwordx16 s[56:71], s[0:1], 0\ns_load_dwordx8 s[72:79], s[0:1], 64\ns_load_dwordx2 s[80:81], s[0:1], 96")
        if not self.o.get("nopf"): self.code_prefetch()
        e(f"v_and_b32 {v(vLane)}, 63, v0\nv_lshrrev_b32 v5, 6, v0")
        e(f"v_readfirstlane_b32 {s(sW)}, v5")
        e(f"v_lshlrev_b32 {v(vL16)}, 4, {v(vLane)}\nv_and_b32 {v(vRho)}, 15, {v(vLane)}\nv_lshrrev_b32 {v(vG)}, 4, {v(vLane)}")
        if self.o.get("map", "b") == "b":
            e("s_and_b32 s82, s2, 7\ns_lshr_b32 s83, s82, 1\ns_and_b32 s84, s82, 1\ns_lshr_b32 s85, s2, 3")
            e(f"s_lshr_b32 s86, s85, 2\ns_lshl_b32 s83, s83, 3\ns_add_u32 {s(sCl)}, s83, s86")
            e(f"s_and_b32 s85, s85, 3\ns_lshl_b32 s84, s84, 2\ns_add_u32 {s(sJ)}, s84, s85")
        else:
            e("s_and_b32 s82, s2, 7\ns_lshl_b32 s82, s82, 2\ns_lshr_b32 s85, s2, 3\ns_lshr_b32 s86, s85, 3")
            e(f"s_add_u32 {s(sCl)}, s82, s86\ns_and_b32 {s(sJ)}, s85, 7")
        e(f"s_mov_b32 {s(sHI)}, 0xffff0000")
        e("s_waitcnt lgkmcnt(0)")
        ptr = {SWS: (80, WS_SIZE), SC: (72, 896), SWMOD: (74, 2408448), SX: (56, 1835008), SWQKV: (58, 1204224), SWO: (60, 401408),
               SWIN: (64, 1605632), SWSP: (66, 8388608), SBSP: (68, 4096), SWOUT: (70, 802816), SOUT: (76, 1835008), DBG: (78, 256)}
        for r, (p, n) in ptr.items():
            e(f"s_mov_b32 {s(r)}, {s(p)}\ns_mov_b32 {s(r+1)}, {s(p+1)}\ns_mov_b32 {s(r+2)}, {n}\ns_mov_b32 {s(r+3)}, 0x20000")
        if self.o.get("wsoff"):
            e(f"s_add_u32 {s(SWS)}, {s(SWS)}, {int(self.o['wsoff'], 0)}\ns_addc_u32 {s(SWS+1)}, {s(SWS+1)}, 0")
        self.t_epoch = e.vm(f"buffer_load_dword v6, off, {srd(SWS)}, 0 sc1")

    def code_prefetch(self):
        e = self.e
        lo, hi = int(self.o.get("pf_lo", 240)), int(self.o.get("pf_hi", 256))
        st = e.snap()
        e(f"s_sub_u32 s82, s2, {lo}\ns_cmp_lt_u32 s82, {hi - lo}\ns_cbranch_scc0 L_nopf")
        e("s_getpc_b64 s[84:85]\nL_pf_pc:")
        e(f"s_sub_u32 s84, s84, L_pf_pc-{NAME}\ns_subb_u32 s85, s85, 0")
        e("v_lshlrev_b32 v5, 7, v0")
        e(f"s_mov_b32 s83, L_end-{NAME}")
        for k in range(2):
            e(f"v_add_u32 v6, {k*32768}, v5\nv_min_u32 v6, s83, v6\nglobal_load_dword a255, v6, s[84:85]")
        e("L_nopf:")
        e.restore(st)

    def nonce(self, nyounger):
        e = self.e
        e(f"s_waitcnt vmcnt({nyounger})")
        e("v_readfirstlane_b32 s82, v6")
        e(f"s_mul_i32 s82, s82, 0x9E3779B1\ns_add_u32 {s(sN)}, s82, 0x7F4A7C15")

    GW, GC, GA = 16, 44, 52
    def gemv_loads(self):
        e = self.e
        GW, GC = self.GW, self.GC
        st = e.snap()
        e("s_sub_u32 s63, s2, 228\ns_sub_u32 s82, s2, 144\ns_cmp_ge_u32 s2, 228\ns_cselect_b32 s63, s63, s82")
        e("s_cmp_ge_u32 s2, 172\ns_cbranch_scc0 L_nogemv_ld")
        e(f"v_lshrrev_b32 v7, 2, {v(vLane)}\nv_mul_u32_u24 v8, 5376, v7\nv_and_b32 v9, 3, {v(vLane)}\nv_lshlrev_b32 v9, 4, v9\nv_add_u32 v8, v8, v9")
        e("v_lshlrev_b32 v7, 1, v7")
        e(f"s_mul_i32 s82, {s(sW)}, {112*5376}\ns_lshl_b32 s83, s63, 6\ns_add_u32 s82, s82, s83\ns_mul_i32 s83, {s(sW)}, 224")
        for n in range(7):
            e(f"buffer_load_dwordx4 {v(GW+4*n,4)}, v8, {srd(SWMOD)}, s82 offen")
            if n < 6: e(f"s_add_u32 s82, s82, {16*5376}")
        for n in range(7):
            e(f"buffer_load_ushort {v(GC+n)}, v7, {srd(SC)}, s83 offen offset:{32*n}")
        e("L_nogemv_ld:")
        e.restore(st)

    def x_dma(self):
        e = self.e
        e(f"v_lshrrev_b32 v7, 5, {v(vLane)}\nv_lshlrev_b32 v7, 3, v7\nv_bfe_u32 v8, {v(vLane)}, 3, 2\nv_add_u32 v7, v7, v8\nv_mul_u32_u24 v7, 896, v7")
        e(f"v_and_b32 v8, 7, {v(vLane)}\nv_xor_b32 v8, v8, {v(vG)}\nv_xor_b32 v9, 4, v8\nv_lshlrev_b32 v8, 4, v8\nv_lshlrev_b32 v9, 4, v9")
        e("v_add_u32 v8, v7, v8\nv_add_u32 v9, v7, v9")
        e(f"s_lshl_b32 s82, {s(sCl)}, 6\ns_lshr_b32 s83, {s(sW)}, 1\ns_lshl_b32 s83, s83, 5\ns_add_u32 s82, s82, s83\ns_and_b32 s83, {s(sW)}, 1\ns_lshl_b32 s83, s83, 2\ns_add_u32 s82, s82, s83")
        e(f"s_mul_i32 s82, s82, 896\ns_lshl_b32 s84, {s(sW)}, 11\ns_add_u32 s84, s84, {L_X}")
        for cb in range(7):
            for par in range(2):
                e(f"s_add_u32 m0, s84, {cb*8192 + par*1024}\ns_add_u32 s83, s82, {par*16*896 + cb*128}")
                e(f"buffer_load_dwordx4 {v(8+par)}, {srd(SX)}, s83 offen lds")
        self.t_x = e.tvm()

    def w7_lane(self, dst, stride):
        e = self.e
        e(f"v_mul_u32_u24 v10, 37, {v(vLane)}\nv_lshrrev_b32 v10, 8, v10\nv_mul_u32_u24 v11, 7, v10\nv_sub_u32 v11, {v(vLane)}, v11\nv_lshlrev_b32 v11, 4, v11")
        e(f"v_mul_u32_u24 v10, {stride}, v10\nv_add_u32 {v(dst)}, v10, v11")

    vWo = 12
    def wqkv_setup(self):
        e = self.e
        self.w7_lane(self.vWo, 2688)
        e(f"s_mul_i32 s75, {s(sW)}, {112*2688}\ns_mul_i32 s82, {s(sJ)}, 112\ns_add_u32 s75, s75, s82\ns_mul_i32 s76, {s(sW)}, {112*112}")

    def wqkv_bg(self, T, lbase, key):
        e = self.e
        for n in range(14):
            e.bg_add(key, f"s_add_u32 s81, s75, {T*896 + n*8*2688}\ns_add_u32 m0, s76, {lbase + n*896}\ns_mov_b32 exec_hi, 0x00ffffff\nbuffer_load_dwordx4 {v(self.vWo)}, {srd(SWQKV)}, s81 offen lds\ns_mov_b32 exec_hi, -1")

    L_PP = L_V + 50176 - 16384
    def pp_slot(self):
        e = self.e
        if self.o.get("pplate"):
            e(f"s_mul_i32 s86, s2, 3\ns_add_u32 s86, s86, {s(sW)}\ns_cmp_lt_u32 {s(sW)}, 3\ns_cselect_b32 s86, s86, 9999")
        else:
            e(f"s_lshl_b32 s86, s2, 2\ns_add_u32 s86, s86, {s(sW)}")

    def prepass_issue(self):
        e = self.e
        st = e.snap()
        self.pp_slot()
        e(f"s_mul_i32 s87, {s(sW)}, 4096\ns_add_u32 s87, s87, {self.L_PP}")
        e("s_mov_b32 m0, s87")
        e("s_cmp_lt_u32 s86, 392\ns_cbranch_scc0 L_pp_not_win_i")
        e(f"s_mul_hi_u32 s82, s86, {(1<<32)//28+1}\ns_mul_i32 s83, s82, 28\ns_sub_u32 s83, s86, s83")
        e(f"v_lshrrev_b32 v10, 3, {v(vLane)}\nv_mul_u32_u24 v10, 3584, v10\nv_and_b32 v11, 7, {v(vLane)}\nv_lshlrev_b32 v11, 4, v11\nv_add_u32 v10, v10, v11")
        e(f"s_mul_i32 s84, s82, {32*3584}\ns_lshl_b32 s85, s83, 7\ns_add_u32 s84, s84, s85")
        for n in range(4):
            e(f"buffer_load_dwordx4 v10, {srd(SWIN)}, s84 offen lds")
            if n < 3: e(f"s_add_u32 s84, s84, {8*3584}\ns_add_u32 m0, m0, 1024")
        e("s_branch L_pp_issued")
        e("L_pp_not_win_i:")
        e("s_cmp_lt_u32 s86, 744\ns_cbranch_scc0 L_pp_issued")
        self.w7_lane(13, 896)
        e("s_mov_b32 exec_hi, 0x00ffffff")
        e("s_cmp_lt_u32 s86, 520\ns_cbranch_scc0 L_pp_wout_i")
        e("s_sub_u32 s82, s86, 392\ns_lshr_b32 s83, s82, 4\ns_and_b32 s82, s82, 15")
        e(f"s_mul_i32 s84, s82, {28*896}\ns_mul_i32 s85, s83, 112\ns_add_u32 s84, s84, s85")
        for n in range(4):
            e(f"buffer_load_dwordx4 v13, {srd(SWO)}, s84 offen lds")
            if n < 3: e(f"s_add_u32 s84, s84, {8*896}\ns_add_u32 m0, m0, 896")
        e("s_branch L_pp_issued7")
        e("L_pp_wout_i:")
        e(f"s_sub_u32 s82, s86, 520\ns_mul_hi_u32 s83, s82, {(1<<32)//28+1}\ns_mul_i32 s84, s83, 28\ns_sub_u32 s82, s82, s84")
        e(f"s_mul_i32 s84, s82, {32*896}\ns_mul_i32 s85, s83, 112\ns_add_u32 s84, s84, s85")
        for n in range(4):
            e(f"buffer_load_dwordx4 v13, {srd(SWOUT)}, s84 offen lds")
            if n < 3: e(f"s_add_u32 s84, s84, {8*896}\ns_add_u32 m0, m0, 896")
        e("L_pp_issued7:")
        e("s_mov_b32 exec_hi, -1")
        e("L_pp_issued:")
        e.restore(st)

    def prepass_finish(self, t_after):
        e = self.e
        e.wait_vm(t_after, force=True)
        st = e.snap()
        R = self.PPR
        self.pp_slot()
        e(f"s_cmp_lt_u32 s86, 744\ns_cbranch_scc0 L_pp_done")
        e(f"s_mul_i32 s87, {s(sW)}, 4096\ns_add_u32 s87, s87, {self.L_PP}")
        e(f"v_lshrrev_b32 v10, 2, {v(vRho)}\nv_and_b32 v11, 3, {v(vRho)}")
        e("s_cmp_lt_u32 s86, 392\ns_cbranch_scc0 L_pp_not_win_f")
        e(f"s_mul_hi_u32 s82, s86, {(1<<32)//28+1}\ns_mul_i32 s83, s82, 28\ns_sub_u32 s83, s86, s83")
        e(f"v_lshlrev_b32 v14, 3, {v(vG)}\nv_add_u32 v14, v14, v10\nv_lshlrev_b32 v14, 7, v14\nv_lshlrev_b32 v11, 3, v11\nv_add_u32 v14, v14, v11\nv_add_u32 v14, s87, v14")
        for q in range(4):
            for par in range(2):
                e(f"ds_read_b64_tr_b16 {v(R+4*q+2*par,2)}, v14 offset:{par*512 + q*32}")
        for q in range(4):
            e(f"s_lshl_b32 s84, s83, 2\ns_add_u32 s84, s84, {q}\ns_cmp_ge_u32 s84, 56\ns_cselect_b32 s85, 1, 0\ns_mul_i32 s88, s85, 56\ns_sub_u32 s84, s84, s88")
            e(f"s_mul_i32 s88, s84, 37\ns_lshr_b32 s88, s88, 8\ns_mul_i32 s89, s88, 7\ns_sub_u32 s84, s84, s89")
            e(f"s_lshl_b32 s88, s88, 1\ns_add_u32 s88, s88, s85\ns_lshl_b32 s88, s88, 3\ns_add_u32 s88, s88, s84\ns_mul_i32 s88, s88, 14\ns_add_u32 s88, s88, s82")
            e(f"s_lshl_b32 s88, s88, 10\ns_add_u32 s88, s88, {WS_WIN}")
            if q == 0: e("s_waitcnt lgkmcnt(0)")
            e(f"buffer_store_dwordx4 {v(R+4*q,4)}, {v(vL16)}, {srd(SWS)}, s88 offen sc1")
        e("s_branch L_pp_done")
        e("L_pp_not_win_f:")
        e("s_cmp_lt_u32 s86, 744\ns_cbranch_scc0 L_pp_done")
        e(f"v_cmp_gt_u32 vcc, 12, {v(vRho)}\nv_cndmask_b32 v15, 0, -1, vcc")
        e("s_cmp_lt_u32 s86, 520\ns_cbranch_scc0 L_pp_wout_f")
        e("s_sub_u32 s88, s86, 392")
        e(f"v_lshlrev_b32 v14, 2, {v(vG)}\nv_add_u32 v14, v14, v10\nv_mul_u32_u24 v14, 112, v14\nv_lshlrev_b32 v11, 4, v11\nv_add_u32 v14, v14, v11\nv_add_u32 v14, s87, v14")
        for ft in range(4):
            for par in range(2):
                e(f"ds_read_b64_tr_b16 {v(R+4*ft+2*par,2)}, v14 offset:{par*16*112 + 64*(ft>>1) + 8*(ft&1)}")
        e(f"v_cmp_gt_u32 vcc, 3, {v(vG)}\nv_cndmask_b32 v13, 0, -1, vcc")
        e("s_waitcnt lgkmcnt(0)")
        for ft in range(4):
            e(f"v_and_b32 {v(R+4*ft+2)}, v13, {v(R+4*ft+2)}\nv_and_b32 {v(R+4*ft+3)}, v13, {v(R+4*ft+3)}")
        e(f"s_lshl_b32 s88, s88, 12\ns_add_u32 s88, s88, {WS_WO}")
        e("s_branch L_pp_st7")
        e("L_pp_wout_f:")
        e("s_sub_u32 s88, s86, 520")
        e(f"v_lshlrev_b32 v14, 3, {v(vG)}\nv_add_u32 v14, v14, v10\nv_mul_u32_u24 v14, 112, v14\nv_lshlrev_b32 v11, 4, v11\nv_add_u32 v14, v14, v11\nv_add_u32 v14, s87, v14")
        for ft in range(4):
            for par in range(2):
                e(f"ds_read_b64_tr_b16 {v(R+4*ft+2*par,2)}, v14 offset:{par*4*112 + 64*(ft>>1) + 8*(ft&1)}")
        e("s_waitcnt lgkmcnt(0)")
        e(f"s_lshl_b32 s88, s88, 12\ns_add_u32 s88, s88, {WS_WOUT}")
        e("L_pp_st7:")
        for ft in (2, 3):
            for k in range(4): e(f"v_and_b32 {v(R+4*ft+k)}, v15, {v(R+4*ft+k)}")
        for ft in range(4):
            e(f"buffer_store_dwordx4 {v(R+4*ft,4)}, {v(vL16)}, {srd(SWS)}, s88 offen offset:{ft*1024} sc1")
        e("L_pp_done:")
        e.restore(st)
        return e.tvm()

    def prepass_flag(self, t_after):
        e = self.e
        e.wait_vm(t_after, force=True)
        st = e.snap()
        self.pp_slot()
        e(f"s_cmp_lt_u32 s86, 768\ns_cbranch_scc0 L_pp_flagged")
        e(f"s_lshl_b32 s88, s86, 2\ns_add_u32 s88, s88, {WS_FW}")
        self.flag_store("s88")
        e("L_pp_flagged:")
        e.restore(st)

    def gemv_compute(self, nyounger):
        e = self.e
        GW, GC, GA = self.GW, self.GC, self.GA
        st = e.snap()
        e("s_cmp_ge_u32 s2, 172\ns_cbranch_scc0 L_nogemv")
        e(f"s_waitcnt vmcnt({min(nyounger, 63)})")
        for n in range(7):
            c = GC + n
            e(f"v_lshlrev_b32 {v(c)}, 16, {v(c)}")
        for n in range(7): e(f"v_mul_f32 {v(60+n)}, {lit(-1.4426950408889634)}, {v(GC+n)}")
        for n in range(7): e(f"v_exp_f32 {v(60+n)}, {v(60+n)}")
        for n in range(7): e(f"v_add_f32 {v(60+n)}, 1.0, {v(60+n)}")
        for n in range(7): e(f"v_rcp_f32 {v(60+n)}, {v(60+n)}")
        for n in range(7): e(f"v_mul_f32 {v(60+n)}, {v(60+n)}, {v(GC+n)}")
        for n in range(7): e(f"v_cvt_pk_bf16_f32 {v(60+n)}, {v(60+n)}, {v(60+n)}")
        if self.o.get("gdot"):
            for n in range(0, 6, 2): e(f"v_perm_b32 {v(GC+n)}, {v(60+n+1)}, {v(60+n)}, s94")
            e(f"v_and_b32 {v(GC+6)}, 0xffff, v66")
            for n in range(0, 7, 2):
                for q in range(4):
                    w0 = GW + 4*n + q
                    w1 = GW + 4*(n+1) + q if n < 6 else w0
                    e(f"v_perm_b32 v68, {v(w1)}, {v(w0)}, s94\nv_perm_b32 v69, {v(w1)}, {v(w0)}, s95")
                    for h_, t_ in ((0, 68), (1, 69)):
                        acc = v(GA+2*q+h_)
                        e(f"v_dot2_f32_bf16 {acc}, {v(t_)}, {v(GC+n)}, {acc if n else 0}")
        else:
            for n in range(7): e(f"v_lshlrev_b32 {v(GC+n)}, 16, {v(60+n)}")
            for n in range(7):
                for q in range(4):
                    w = GW + 4*n + q
                    e(f"v_lshlrev_b32 v60, 16, {v(w)}\nv_and_b32 v61, {s(sHI)}, {v(w)}")
                    if n == 0: e(f"v_mul_f32 {v(GA+2*q)}, v60, {v(GC+n)}\nv_mul_f32 {v(GA+2*q+1)}, v61, {v(GC+n)}")
                    else: e(f"v_fmac_f32 {v(GA+2*q)}, v60, {v(GC+n)}\nv_fmac_f32 {v(GA+2*q+1)}, v61, {v(GC+n)}")
        for rot in (4, 8):
            for k in range(8):
                e(f"v_add_f32_dpp {v(GA+k)}, {v(GA+k)}, {v(GA+k)} row_ror:{rot} row_mask:0xf bank_mask:0xf")
        e(f"v_lshlrev_b32 v60, 7, {v(vG)}\nv_and_b32 v61, 3, {v(vLane)}\nv_lshlrev_b32 v61, 5, v61\nv_add_u32 v60, v60, v61")
        e(f"s_lshl_b32 s82, {s(sW)}, 9\ns_add_u32 s82, s82, {L_GS}\nv_add_u32 v60, s82, v60")
        e(f"ds_write_b128 v60, {v(GA,4)}\nds_write_b128 v60, {v(GA+4,4)} offset:16")
        e("s_waitcnt lgkmcnt(0)\ns_barrier")
        e(f"s_cmp_eq_u32 {s(sW)}, 3\ns_cbranch_scc0 L_nogemv")
        e(f"v_and_b32 v60, 31, {v(vLane)}\nv_lshlrev_b32 v60, 2, v60\nv_lshrrev_b32 v61, 5, {v(vLane)}\nv_lshlrev_b32 v61, 10, v61\nv_add_u32 v60, v60, v61\nv_add_u32 v60, {L_GS}, v60")
        for p in range(8): e(f"ds_read_b32 {v(GA+p)}, v60 offset:{p*128}")
        e("s_waitcnt lgkmcnt(0)")
        for p in range(1, 8): e(f"v_add_f32 {v(GA)}, {v(GA)}, {v(GA+p)}")
        e(f"v_mov_b32 v61, {v(GA)}\nv_permlane32_swap_b32 {v(GA)}, v61\nv_add_f32 {v(GA)}, {v(GA)}, v61")
        e(f"v_cvt_pk_bf16_f32 v60, {v(GA)}, {v(GA)}\nv_lshlrev_b32 v60, 16, v60")
        e("s_sub_u32 s82, s63, 14\ns_cmp_lt_u32 s82, 14\ns_cselect_b32 s83, 1, 0\ns_sub_u32 s82, s63, 56\ns_cmp_lt_u32 s82, 14\ns_cselect_b32 s83, 1, s83")
        e("s_cmp_eq_u32 s83, 1\ns_cbranch_scc0 L_gemv_noplus")
        e("v_add_f32 v60, 1.0, v60\nv_cvt_pk_bf16_f32 v60, v60, v60\nv_lshlrev_b32 v60, 16, v60")
        e("L_gemv_noplus:")
        e("v_mov_b32_dpp v61, v60 quad_perm:[1,0,3,2] row_mask:0xf bank_mask:0xf")
        e(f"v_cvt_pk_bf16_f32 v62, v60, v61\nv_mov_b32 v63, {s(sN)}")
        e(f"v_and_b32 v60, 31, {v(vLane)}\nv_lshlrev_b32 v60, 2, v60")
        e(f"s_lshl_b32 s82, s63, 7\ns_add_u32 s82, s82, {WS_MODG}")
        e("s_mov_b32 exec_lo, 0x55555555\ns_mov_b32 exec_hi, 0")
        e(f"buffer_store_dwordx2 v[62:63], v60, {srd(SWS)}, s82 offen sc1")
        e("s_mov_b64 exec, -1")
        e("L_nogemv:")
        e.restore(st)

    XB = 16
    PPR = 128
    def XR(self, st): return self.XB + st*8
    AS, AQ = 248, 250
    def ln1(self):
        e = self.e
        AS, AQ = self.AS, self.AQ
        e(f"v_lshrrev_b32 v6, 1, {v(vRho)}\nv_xor_b32 v6, v6, {v(vG)}\nv_xor_b32 v7, 4, v6\nv_lshlrev_b32 v6, 4, v6\nv_lshlrev_b32 v7, 4, v7")
        e(f"v_lshlrev_b32 v9, 7, {v(vRho)}\nv_add_u32 v6, v6, v9\nv_add_u32 v7, v7, v9")
        e(f"s_lshl_b32 s82, {s(sW)}, 11\ns_add_u32 s82, s82, {L_X}")
        e("v_add_u32 v6, s82, v6\nv_add_u32 v7, s82, v7")
        tk = {}
        def rd(st): tk[st] = e.ds(f"ds_read_b128 {v(self.XR(st)+4,4)}, {v(6+(st&1))} offset:{(st>>1)*8192}")
        for st in range(4): rd(st)
        for st in range(14):
            if st + 4 < 14: rd(st + 4)
            e.wait_lg(tk[st])
            X = self.XR(st)
            for q in range(4): e(f"v_lshlrev_b32 {v(X+q)}, 16, {v(X+4+q)}")
            for q in range(4): e(f"v_and_b32 {v(X+4+q)}, {s(sHI)}, {v(X+4+q)}")
            e.tick()
            for q in range(4):
                if st == 0 and q == 0:
                    e(f"v_pk_add_f32 {v(AS,2)}, {v(X,2)}, {v(X+2,2)}\nv_pk_mul_f32 {v(AQ,2)}, {v(X,2)}, {v(X,2)}")
                else:
                    if not (st == 0 and q == 1): e(f"v_pk_add_f32 {v(AS,2)}, {v(AS,2)}, {v(X+2*q,2)}")
                    e(f"v_pk_fma_f32 {v(AQ,2)}, {v(X+2*q,2)}, {v(X+2*q,2)}, {v(AQ,2)}")

    def ln1_finish(self):
        e = self.e
        AS, AQ = self.AS, self.AQ
        e(f"v_add_f32 {v(AS)}, {v(AS)}, {v(AS+1)}\nv_add_f32 {v(AQ)}, {v(AQ)}, {v(AQ+1)}")
        self.allreduce_g2(AS, AQ, 6, 7, "add")
        self.stats_finish(AS, AQ, 448, 252, "nmr")
        for st in range(14):
            X = self.XR(st)
            for q in range(4):
                e(f"v_pk_fma_f32 {v(X+2*q,2)}, {v(X+2*q,2)}, v[252:253], v[252:253] op_sel:[0,0,1] op_sel_hi:[1,0,1]")

    def mod_wait1(self):
        e = self.e
        st = e.snap()
        e(f"s_cmp_eq_u32 {s(sW)}, 3\ns_cbranch_scc0 L_mod1_skip")
        R, AD = 240, 128
        e(f"v_add_u32 v7, 192, {v(vLane)}\nv_min_u32 v7, 223, v7\nv_lshlrev_b32 v8, 4, v7")
        for i in range(4):
            t, u, x, y = 132, 133, 134, 135
            if i < 3: e(f"v_add_u32 {v(t)}, {64*i}, {v(vLane)}")
            else: e(f"v_mov_b32 {v(t)}, v7")
            e(f"v_cmp_gt_u32 vcc, 112, {v(t)}\nv_subrev_u32 {v(u)}, 112, {v(t)}\nv_cndmask_b32 {v(u)}, {v(u)}, {v(t)}, vcc")
            e(f"v_cndmask_b32 {v(y)}, 0, 8, vcc")
            e(f"v_and_b32 {v(x)}, 1, {v(u)}\nv_lshlrev_b32 {v(x)}, 2, {v(x)}\nv_add_u32 {v(y)}, {v(y)}, {v(x)}\nv_lshlrev_b32 {v(y)}, 4, {v(y)}")
            e(f"v_bfe_u32 {v(x)}, {v(u)}, 1, 2\nv_lshlrev_b32 {v(x)}, 8, {v(x)}\nv_add_u32 {v(y)}, {v(y)}, {v(x)}")
            e(f"v_bfe_u32 {v(x)}, {v(u)}, 3, 2\nv_lshlrev_b32 {v(x)}, 2, {v(x)}\nv_add_u32 {v(y)}, {v(y)}, {v(x)}")
            e(f"v_lshrrev_b32 {v(x)}, 5, {v(u)}\nv_lshlrev_b32 {v(x)}, 10, {v(x)}\nv_add_u32 {v(y)}, {v(y)}, {v(x)}\nv_add_u32 {v(AD+i)}, {L_M}, {v(y)}")
        self.poll([(R, 4, vL16, WS_MODG, 0), (R+4, 4, vL16, WS_MODG, 1024), (R+8, 4, vL16, WS_MODG, 2048), (R+12, 4, 8, WS_MODG, 0)],
                  [(R+1, None), (R+3, None), (R+5, None), (R+7, None), (R+9, None), (R+11, None), (R+13, None), (R+15, None)], stem="mod1")
        for i in range(4):
            r = R + 4*i
            e(f"v_and_b32 {v(r+1)}, {s(sHI)}, {v(r)}\nv_and_b32 {v(r+3)}, {s(sHI)}, {v(r+2)}\nv_lshlrev_b32 {v(r)}, 16, {v(r)}\nv_lshlrev_b32 {v(r+2)}, 16, {v(r+2)}")
            for k in range(4): e(f"ds_write_b32 {v(AD+i)}, {v(r+k)} offset:{16*k}")
        e("s_waitcnt lgkmcnt(0)")
        e("L_mod1_skip:")
        e.restore(st)

    def modulate(self):
        e = self.e
        MS, T = 128, 144
        e(f"v_add_u32 v7, {L_M}, {v(vL16)}")
        tk = [e.ds(f"ds_read_b128 {v(MS+4*k,4)}, v7 offset:{k*1024}") for k in range(4)]
        e(f"s_lshl_b32 s82, {s(sW)}, 11\ns_add_u32 s82, s82, {L_X}\nv_add_u32 v6, s82, {v(vL16)}")
        perm = [0, 2, 4, 6, 1, 3, 5, 7]
        for st in range(14):
            if st % 4 == 0: e.wait_lg(tk[st >> 2])
            X, R = self.XR(st), MS + st
            t = T + 8*(st & 1)
            for p in range(8): e(f"v_mov_b32_dpp {v(t+p)}, {v(R)} row_newbcast:{8+perm[p]} row_mask:0xf bank_mask:0xf")
            for p in range(8): e(f"v_fmac_f32_dpp {v(t+p)}, {v(R)}, {v(X+p)} row_newbcast:{perm[p]} row_mask:0xf bank_mask:0xf")
            e.tick()
            for q in range(4): e(f"v_cvt_pk_bf16_f32 {v(X+q)}, {v(t+2*q)}, {v(t+2*q+1)}")
            e(f"ds_write_b128 v6, {v(X,4)} offset:{(st>>1)*8192 + (st&1)*1024}")

    HB = 16
    def HR(self, st, tau): return self.HB + (st*2 + tau)*4
    def h_read(self):
        e = self.e
        e(f"s_lshr_b32 s82, {s(sW)}, 1\ns_lshl_b32 s82, s82, 12\ns_add_u32 s82, s82, {L_X}\nv_add_u32 v7, s82, {v(vL16)}")
        for st in range(14):
            for tau in range(2):
                e(f"ds_read_b128 {v(self.HR(st,tau),4)}, v7 offset:{(st>>1)*8192 + tau*2048 + (st&1)*1024}")

    ACC = {"k": 128, "v": 144, "q": 160}
    RING = 176
    def qkv_gemm(self, which, lbase, tick_every=0):
        e = self.e
        base = self.ACC[which]
        acc = [[base, base+4], [base+8, base+12]]
        if which == "k":
            e(f"v_lshrrev_b32 v8, 2, {v(vRho)}\nv_lshlrev_b32 v8, 1, v8\nv_lshlrev_b32 v6, 3, {v(vG)}\nv_add_u32 v6, v6, v8\nv_mul_u32_u24 v6, 112, v6")
            e(f"v_and_b32 v8, 3, {v(vRho)}\nv_lshlrev_b32 v8, 3, v8\nv_add_u32 v6, v6, v8")
            e(f"s_and_b32 s82, {s(sW)}, 1\ns_mul_i32 s82, s82, 56\nv_add_u32 v6, s82, v6")
        e(f"v_add_u32 v7, {lbase}, v6")
        def reads(st):
            return [f"ds_read_b64_tr_b16 {v(self.RING + (st % 4)*8 + 4*td + 2*par, 2)}, v7 offset:{st*3584 + par*112 + 32*td}"
                    for td in range(2) for par in range(2)]
        def mfmas(st):
            out = []
            for tau in range(2):
                for td in range(2):
                    w, h = v(self.RING + (st % 4)*8 + 4*td, 4), v(self.HR(st, tau), 4)
                    A, B = (h, w) if which == "v" else (w, h)
                    out.append(f"{MF} {v(acc[tau][td],4)}, {A}, {B}, {v(acc[tau][td],4) if st else 0}")
            return out
        self.gemm_loop(14, reads, mfmas, depth=3, pre=lambda st: e.tick())
        return acc

    def KF(self, tau): return 208 + 4*tau
    def VF(self, td): return 216 + 4*td
    def QF(self, tau): return 224 + 4*tau
    def kvq_setup(self):
        e = self.e
        e(f"s_and_b32 s82, {s(sW)}, 1\ns_lshl_b32 s83, {s(sJ)}, 1\ns_add_u32 s58, s83, s82")
        e(f"s_lshr_b32 s82, {s(sW)}, 1\ns_lshl_b32 s83, {s(sCl)}, 1\ns_add_u32 s59, s83, s82")
        e(f"s_lshl_b32 s82, s58, 6\ns_add_u32 s82, s82, s59\ns_lshl_b32 s60, s82, 12\ns_add_u32 s60, s60, {WS_KV}")
        e(f"s_lshl_b32 s61, s82, 2\ns_add_u32 s61, s61, {WS_F1K}")
        e(f"v_cmp_gt_u32 vcc, 3, {v(vG)}\nv_cndmask_b32 v13, 0, -1, vcc")
        e(f"v_cmp_gt_u32 vcc, 12, {v(vRho)}\nv_cndmask_b32 v14, 0, -1, vcc")
        e(f"v_cmp_eq_u32 vcc, 12, {v(vRho)}\nv_mov_b32 v15, 0x3f803f80\nv_cndmask_b32 v15, 0, v15, vcc")

    def k_epilogue(self, acc):
        e = self.e
        for tau in range(2):
            for td in range(2):
                A = acc[tau][td]
                e(f"v_cvt_pk_bf16_f32 {v(self.KF(tau)+2*td)}, {v(A)}, {v(A+1)}\nv_cvt_pk_bf16_f32 {v(self.KF(tau)+2*td+1)}, {v(A+2)}, {v(A+3)}")
            e(f"v_and_b32 {v(self.KF(tau)+2)}, v13, {v(self.KF(tau)+2)}\nv_and_b32 {v(self.KF(tau)+3)}, v13, {v(self.KF(tau)+3)}")
            e(f"buffer_store_dwordx4 {v(self.KF(tau),4)}, {v(vL16)}, {srd(SWS)}, s60 offen offset:{tau*1024} sc1")

    def v_epilogue(self, acc):
        e = self.e
        for td in range(2):
            for tau in range(2):
                A = acc[tau][td]
                e(f"v_cvt_pk_bf16_f32 {v(self.VF(td)+2*tau)}, {v(A)}, {v(A+1)}\nv_cvt_pk_bf16_f32 {v(self.VF(td)+2*tau+1)}, {v(A+2)}, {v(A+3)}")
            if td == 1:
                for k in range(4): e(f"v_and_or_b32 {v(self.VF(1)+k)}, {v(self.VF(1)+k)}, v14, v15")
            e(f"buffer_store_dwordx4 {v(self.VF(td),4)}, {v(vL16)}, {srd(SWS)}, s60 offen offset:{(2+td)*1024} sc1")

    def q_epilogue(self, acc):
        e = self.e
        e(f"s_mov_b32 s82, {lit(QSCALE)}")
        for tau in range(2):
            for td in range(2):
                A = acc[tau][td]
                for k in range(4): e(f"v_mul_f32 {v(A+k)}, s82, {v(A+k)}")
                e(f"v_cvt_pk_bf16_f32 {v(self.QF(tau)+2*td)}, {v(A)}, {v(A+1)}\nv_cvt_pk_bf16_f32 {v(self.QF(tau)+2*td+1)}, {v(A+2)}, {v(A+3)}")
            e(f"v_and_b32 {v(self.QF(tau)+2)}, v13, {v(self.QF(tau)+2)}\nv_and_b32 {v(self.QF(tau)+3)}, v13, {v(self.QF(tau)+3)}")

    SB, OB = 16, 160
    def SR(self, i, tq): return self.SB + (i*2 + tq)*8
    def OR_(self, td, tq): return self.OB + (td*2 + tq)*4
    def att_bias(self):
        e = self.e
        e(f"v_lshrrev_b32 v5, 2, {v(vRho)}\nv_sub_u32 v5, v5, {v(vG)}\nv_lshlrev_b32 v5, 3, v5\nv_and_b32 v6, 3, {v(vRho)}\nv_add_u32 v5, v5, v6")
        e(f"v_mov_b32 v6, {lit(-1e30)}\nv_mov_b32 v7, 0")
        for tq in range(2):
            for tk in range(2):
                for r in range(4):
                    e(f"v_cmp_le_i32 {s(82+2*r,2)}, {4*(tk-tq)+r}, v5")
                for r in range(4):
                    e(f"v_cndmask_b32 {v(self.SR(8,tq)+4*tk+r)}, v6, v7, {s(82+2*r,2)}")
                    e(f"v_cndmask_b32 {v(self.SR(0,tq)+4*tk+r)}, v7, v6, {s(82+2*r,2)}")

    FWR, M2R = 232, (244, 248)
    def late_loads(self):
        e = self.e
        e(f"s_lshl_b32 s82, {s(sW)}, 6\nv_add_u32 v10, s82, {v(vLane)}\nv_min_u32 v10, 223, v10\nv_lshlrev_b32 v9, 4, v10")
        e(f"s_mov_b32 s92, {WS_FW}\ns_mov_b32 s93, {WS_MODG + 3584}")
        for k in range(3): e(f"buffer_load_dwordx4 {v(self.FWR+4*k,4)}, {v(vL16)}, {srd(SWS)}, s92 offen offset:{k*1024} sc1")
        e(f"buffer_load_dwordx4 {v(self.M2R[0],4)}, v9, {srd(SWS)}, s93 offen sc1")
        e(f"buffer_load_dwordx4 {v(self.M2R[1],4)}, v9, {srd(SWS)}, s93 offen offset:3584 sc1")
        return e.tvm()

    def late_check(self, t):
        e = self.e
        e.wait_vm(t)
        chk = [self.FWR + k for k in range(12)] + [self.M2R[0]+1, self.M2R[0]+3, self.M2R[1]+1, self.M2R[1]+3]
        Lok = e.label("lateok")
        self.tags_differ(chk)
        e(f"s_cmp_eq_u64 vcc, 0\ns_cbranch_scc1 {Lok}")
        st = e.snap()
        self.poll([(self.FWR, 4, vL16, WS_FW, 0), (self.FWR+4, 4, vL16, "s92", 1024), (self.FWR+8, 4, vL16, "s92", 2048),
                   (self.M2R[0], 4, 9, WS_MODG + 3584, 0), (self.M2R[1], 4, 9, "s93", 3584)], [(c, None) for c in chk], stem="late")
        e.restore(st)
        e(f"{Lok}:")
        A, B = self.M2R
        e(f"v_lshlrev_b32 v10, 3, v10\nv_add_u32 v10, {L_M}, v10")
        e(f"v_mov_b32 {v(A+1)}, {v(A+2)}\nv_mov_b32 {v(B+1)}, {v(B+2)}")
        e(f"ds_write_b64 v10, {v(A,2)}\nds_write_b64 v10, {v(B,2)} offset:1792")

    def att_load_groups(self, abase, off, key):
        out = []
        for i in range(8):
            for t in range(2):
                out.append(((key, i*2+t), f"buffer_load_dwordx4 {a(abase + (i*2+t)*4, 4)}, {v(vL16)}, {srd(SWS)}, {s(84+i)} offen offset:{off + t*1024} sc1"))
        return out

    def att_offsets(self):
        e = self.e
        for i in range(8):
            e(f"s_add_u32 s82, s59, {i}\ns_sub_u32 s83, s60, {(8-i)*4096}\ns_cmp_ge_u32 s82, 8\ns_cselect_b32 {s(84+i)}, s83, {OOB}")

    def att_scores(self):
        e = self.e
        for i in [8] + list(range(8)):
            for t in range(2):
                if i < 8: e.wait_vm(e.bgt["k", i*2+t])
                A = v(self.KF(t), 4) if i == 8 else a((i*2+t)*4, 4)
                for tq in range(2):
                    D = v(self.SR(i, tq) + 4*t, 4)
                    e(f"{MF} {D}, {A}, {v(self.QF(tq),4)}, {D if i in (0, 8) else 0}")
                if i < 8: e.tick()
        e("s_cmp_ge_u32 s59, 8\ns_cbranch_scc1 L_att_nofix")
        e(f"v_mov_b32 v6, {lit(-1e30)}")
        for i in range(8):
            e(f"s_add_u32 s82, s59, {i}\ns_cmp_ge_u32 s82, 8\ns_cbranch_scc1 L_att_nofix")
            for r in range(16): e(f"v_mov_b32 {v(self.SR(i,0)+r)}, v6")
        e("L_att_nofix:")

    def att_softmax_pv(self, ntick):
        e = self.e
        M = [176, 178]
        chains = []
        for tq in range(2):
            regs = [self.SR(i, tq) + r for i in [8] + list(range(8)) for r in range(8)]
            c = [f"v_max3_f32 {v(M[tq])}, {v(regs[0])}, {v(regs[1])}, {v(regs[2])}", f"v_max_f32 {v(M[tq])}, {v(M[tq])}, {v(regs[3])}"]
            c += [f"v_max3_f32 {v(M[tq])}, {v(M[tq])}, {v(regs[k])}, {v(regs[k+1])}" for k in range(4, 72, 2)]
            chains.append(c)
        k = 0
        for x, y in zip(*chains):
            e(x); e(y); k += 1
            if k % 6 == 0: e.tick()
        self.allreduce_g2(M[0], M[1], 5, 6, "max")
        units = [(i, tq) for i in [8] + list(range(8)) for tq in range(2)]
        first = set()
        def pv(u):
            i, tq = u
            out = []
            for td in range(2):
                A = v(self.VF(td), 4) if i == 8 else a(64 + (i*2+td)*4, 4)
                O = v(self.OR_(td, tq), 4)
                c = O if (td, tq) in first else "0"
                first.add((td, tq))
                out.append((None if i == 8 else ("v", i*2+td), f"{MF} {O}, {A}, {v(self.SR(i,tq),4)}, {c}"))
            return out
        def emit_pv(item):
            key, txt = item
            if key is not None: e.wait_bg(key)
            e(txt)
        prev = None
        for n, u in enumerate(units):
            i, tq = u
            B = self.SR(i, tq)
            for q in range(4):
                e(f"v_pk_add_f32 {v(B+2*q,2)}, {v(B+2*q,2)}, {v(M[tq],2)} op_sel_hi:[1,0] neg_lo:[0,1] neg_hi:[0,1]")
            pm = pv(prev) if prev else []
            for k in range(8):
                e(f"v_exp_f32 {v(B+k)}, {v(B+k)}")
                if k in (1, 3) and pm: emit_pv(pm.pop(0))
                if k in (5, 7) and ntick > 0 and (k == 5 or n % 2 == 0):
                    e.tick(); ntick -= 1
            for q in range(4):
                e(f"v_cvt_pk_bf16_f32 {v(B+q)}, {v(B+2*q)}, {v(B+2*q+1)}")
            prev = u
        for it in pv(prev): emit_pv(it)

    def att_epilogue(self):
        e = self.e
        e(f"s_lshr_b32 s82, {s(sW)}, 1\ns_lshl_b32 s82, s82, 1\ns_lshl_b32 s83, {s(sCl)}, 2\ns_add_u32 s82, s82, s83\ns_lshl_b32 s82, s82, 4\ns_add_u32 s82, s82, s58\ns_lshl_b32 s82, s82, 10\ns_add_u32 s64, s82, {WS_O}\ns_add_u32 s65, s64, 16384")
        e(f"s_lshl_b32 s82, {s(sCl)}, 7\ns_add_u32 s62, s82, {WS_F2}\ns_lshl_b32 s83, {s(sJ)}, 2\ns_add_u32 s66, s62, s83")
        L = [8, 10]
        for tq in range(2): e(f"v_mov_b32 {v(L[tq])}, {v(self.OR_(1,tq))}\nv_mov_b32 {v(L[tq]+1)}, {v(self.OR_(1,tq))}")
        for tq in range(2): e(f"v_permlane32_swap_b32 {v(L[tq])}, {v(L[tq]+1)}")
        for tq in range(2): e(f"v_mov_b32 {v(L[tq])}, {v(L[tq]+1)}")
        for tq in range(2): e(f"v_permlane16_swap_b32 {v(L[tq])}, {v(L[tq]+1)}")
        for tq in range(2): e(f"v_rcp_f32 {v(L[tq])}, {v(L[tq]+1)}")
        for tq in range(2):
            P = 180 + 4*tq
            for td in range(2):
                O = self.OR_(td, tq)
                for q in range(2): e(f"v_pk_mul_f32 {v(O+2*q,2)}, {v(O+2*q,2)}, {v(L[tq],2)} op_sel_hi:[1,0]")
                e(f"v_cvt_pk_bf16_f32 {v(P+2*td)}, {v(O)}, {v(O+1)}\nv_cvt_pk_bf16_f32 {v(P+2*td+1)}, {v(O+2)}, {v(O+3)}")
            e(f"buffer_store_dwordx4 {v(P,4)}, {v(vL16)}, {srd(SWS)}, {s(64+tq)} offen sc1")
        self.publish("s66", pre=int(self.o.get("o_pre", 12)), post=int(self.o.get("o_post", 0)), name="o")

    def wo_bg(self):
        e = self.e
        e(f"s_lshl_b32 s75, {s(sJ)}, 16\ns_lshl_b32 s76, {s(sW)}, 14\ns_add_u32 s75, s75, s76\ns_add_u32 s75, s75, {WS_WO}")
        for n in range(16):
            e.bg_add("wo", f"s_add_u32 s81, s75, {n*1024}\ns_add_u32 m0, s76, {L_WO + n*1024}\nbuffer_load_dwordx4 {v(vL16)}, {srd(SWS)}, s81 offen sc1 lds")

    WZ2, WZ1 = 128, 0
    def win_bg(self, part, sb):
        e = self.e
        base = self.WZ2 if part else self.WZ1
        for tl in range(2):
            e(f"s_lshl_b32 s82, {s(sJ)}, 1\ns_add_u32 s82, s82, {part}\ns_lshl_b32 s82, s82, 3\ns_lshl_b32 s83, {s(sW)}, 1\ns_add_u32 s83, s83, {tl}\ns_add_u32 s82, s82, s83")
            e(f"s_mul_i32 s82, s82, {14*1024}\ns_add_u32 s82, s82, {WS_WIN}\ns_cmp_lt_u32 s83, 7\ns_cselect_b32 {s(sb+tl)}, s82, {OOB}")
        for st in range(14):
            for tl in range(2):
                e.bg_add(("win", part), f"s_add_u32 s81, {s(sb+tl)}, {(st >> 2)*4096}\nbuffer_load_dwordx4 {a(base + (tl*14+st)*4, 4)}, {v(vL16)}, {srd(SWS)}, s81 offen offset:{(st & 3)*1024} sc1")

    X1 = 248
    def row_offset(self, dst):
        e = self.e
        e(f"v_lshrrev_b32 v6, 2, {v(vRho)}\nv_lshlrev_b32 v6, 3, v6\nv_and_b32 v7, 3, {v(vRho)}\nv_add_u32 v6, v6, v7")
        e(f"s_lshr_b32 s82, {s(sW)}, 1\ns_lshl_b32 s82, s82, 5\ns_and_b32 s83, {s(sW)}, 1\ns_lshl_b32 s83, s83, 2\ns_add_u32 s82, s82, s83\ns_lshl_b32 s83, {s(sCl)}, 6\ns_add_u32 s82, s82, s83")
        e(f"v_add_u32 v6, s82, v6\nv_mul_u32_u24 v6, 896, v6\nv_lshlrev_b32 v7, 4, {v(vG)}\nv_add_u32 {v(dst)}, v6, v7\ns_mul_i32 s67, {s(sJ)}, 112")

    def xslice_bg(self):
        e = self.e
        self.row_offset(247)
        e.bg_add("xs", f"buffer_load_dwordx4 v[188:191], v247, {srd(SX)}, s67 offen")
        e.bg_add("xs", f"buffer_load_dwordx4 v[192:195], v247, {srd(SX)}, s67 offen offset:64")

    def p3(self, held):
        e = self.e
        OF, ACC, RING = 16, 80, 96
        self.spoll("s62", "f2", fast=True)
        self.stamp("f2poll")
        e(f"s_lshl_b32 s82, {s(sCl)}, 2\ns_add_u32 s82, s82, {s(sW)}\ns_lshl_b32 s82, s82, 14\ns_add_u32 s82, s82, {WS_O}")
        to = []
        for h in range(16):
            to.append(e.vm(f"buffer_load_dwordx4 {v(OF+4*h,4)}, {v(vL16)}, {srd(SWS)}, s82 offen offset:{(h & 3)*1024} sc1"))
            if (h & 3) == 3 and h < 15: e("s_add_u32 s82, s82, 4096")
        e(f"v_add_u32 v7, {L_WO}, {v(vL16)}")
        GA, M2 = 144, 152
        e(f"v_lshlrev_b32 v8, 4, {v(vG)}\ns_mul_i32 s82, {s(sJ)}, 112\ns_add_u32 s82, s82, {L_M}\nv_add_u32 v8, s82, v8")
        e(f"ds_read_b128 {v(GA,4)}, v8\nds_read_b128 {v(GA+4,4)}, v8 offset:64\nds_read_b128 {v(M2,4)}, v8 offset:1792\nds_read_b128 {v(M2+4,4)}, v8 offset:{1792+64}")
        e(f"v_cmp_gt_u32 vcc, 3, {v(vG)}\nv_cndmask_b32 v9, 0, -1, vcc")
        self.gemm_loop(16, lambda h: [f"ds_read_b128 {v(RING + ((h % 3)*4 + ft)*4, 4)}, v7 offset:{(h*4+ft)*1024}" for ft in range(4)],
                       lambda h: [f"{MF} {v(ACC+4*ft,4)}, {v(RING + ((h % 3)*4 + ft)*4, 4)}, {v(OF+4*h,4)}, {v(ACC+4*ft,4) if h else 0}" for ft in range(4)],
                       depth=2, pre=lambda h: e.wait_vm(to[h]))
        self.stamp("p3gemm")
        for k in range(4): e(f"v_and_b32 {v(192+k)}, v9, {v(192+k)}")
        XU, GU, MU = 16, 32, 48
        for k in range(8):
            e(f"v_lshlrev_b32 {v(XU+2*k)}, 16, {v(188+k)}\nv_and_b32 {v(XU+2*k+1)}, {s(sHI)}, {v(188+k)}")
            e(f"v_lshlrev_b32 {v(GU+2*k)}, 16, {v(GA+k)}\nv_and_b32 {v(GU+2*k+1)}, {s(sHI)}, {v(GA+k)}")
        for k in range(8):
            e(f"v_pk_fma_f32 {v(XU+2*k,2)}, {v(GU+2*k,2)}, {v(ACC+2*k,2)}, {v(XU+2*k,2)}")
        for k in range(8): e(f"v_cvt_pk_bf16_f32 {v(self.X1+k)}, {v(XU+2*k)}, {v(XU+2*k+1)}")
        for k in range(8):
            e(f"v_lshlrev_b32 {v(XU+2*k)}, 16, {v(self.X1+k)}\nv_and_b32 {v(XU+2*k+1)}, {s(sHI)}, {v(self.X1+k)}")
            e(f"v_lshlrev_b32 {v(MU+2*k)}, 16, {v(M2+k)}\nv_and_b32 {v(MU+2*k+1)}, {s(sHI)}, {v(M2+k)}")
        YP = 64
        for k in range(8):
            e(f"v_pk_mul_f32 {v(MU+2*k,2)}, {v(MU+2*k,2)}, {v(XU+2*k,2)}")
        for k in range(8): e(f"v_cvt_pk_bf16_f32 {v(YP+k)}, {v(MU+2*k)}, {v(MU+2*k+1)}")
        e(f"s_lshl_b32 s82, {s(sCl)}, 2\ns_add_u32 s82, s82, {s(sW)}\ns_mul_i32 s82, s82, 14336\ns_mul_i32 s83, {s(sJ)}, 1792\ns_add_u32 s82, s82, s83\ns_add_u32 s82, s82, {WS_Y}")
        e(f"buffer_store_dwordx4 {v(YP,4)}, {v(vL16)}, {srd(SWS)}, s82 offen sc1")
        e("s_mov_b32 exec_hi, 0x0000ffff")
        e(f"buffer_store_dwordx4 {v(YP+4,4)}, {v(vL16)}, {srd(SWS)}, s82 offen offset:1024 sc1")
        e("s_mov_b32 exec_hi, -1")
        SS, QQ = 72, 74
        e(f"v_pk_add_f32 {v(SS,2)}, {v(XU,2)}, {v(XU+2,2)}\nv_pk_mul_f32 {v(QQ,2)}, {v(XU,2)}, {v(XU,2)}")
        for k in range(2, 8): e(f"v_pk_add_f32 {v(SS,2)}, {v(SS,2)}, {v(XU+2*k,2)}")
        for k in range(1, 8): e(f"v_pk_fma_f32 {v(QQ,2)}, {v(XU+2*k,2)}, {v(XU+2*k,2)}, {v(QQ,2)}")
        e(f"v_add_f32 {v(SS)}, {v(SS)}, {v(SS+1)}\nv_add_f32 {v(SS+1)}, {v(QQ)}, {v(QQ+1)}")
        self.allreduce_g2(SS, SS+1, 5, 6, "add")
        e(f"s_lshl_b32 s82, {s(sCl)}, 3\ns_add_u32 s82, s82, {s(sJ)}\ns_lshl_b32 s82, s82, 9\ns_lshl_b32 s83, {s(sW)}, 7\ns_add_u32 s82, s82, s83\ns_add_u32 s82, s82, {WS_ST1}")
        e(f"v_lshlrev_b32 v7, 3, {v(vRho)}")
        e("s_mov_b32 exec_lo, 0xffff\ns_mov_b32 exec_hi, 0")
        e(f"buffer_store_dwordx2 {v(SS,2)}, v7, {srd(SWS)}, s82 offen sc1")
        e("s_mov_b64 exec, -1")
        e(f"s_lshl_b32 s82, {s(sCl)}, 7\ns_add_u32 s62, s82, {WS_F3}\ns_lshl_b32 s83, {s(sJ)}, 2\ns_add_u32 s66, s62, s83")
        e.bgq = held
        self.publish("s66", pre=int(self.o.get("y_pre", 16)), post=int(self.o.get("y_post", 0)), name="y")

    A2, A1, YR = 16, 48, 80
    UVD, UU, VV, MSR = 128, 144, 160, 176
    ST1R, ST2R, Z1P = 188, 196, 232
    def reduce4(self, r0, r1, r2, r3):
        e = self.e
        e(f"v_permlane32_swap_b32 {v(r0)}, {v(r2)}\nv_permlane32_swap_b32 {v(r1)}, {v(r3)}")
        e(f"v_add_f32 {v(r0)}, {v(r0)}, {v(r2)}\nv_add_f32 {v(r1)}, {v(r1)}, {v(r3)}")
        e(f"v_permlane16_swap_b32 {v(r0)}, {v(r1)}\nv_add_f32 {v(r0)}, {v(r0)}, {v(r1)}")

    def stats_finish(self, S_, Q_, n, out, kind):
        e = self.e
        e(f"v_mul_f32 {v(S_)}, {lit(1/n)}, {v(S_)}\nv_mul_f32 {v(Q_)}, {lit(1/n)}, {v(Q_)}")
        e(f"v_fma_f32 {v(Q_)}, -{v(S_)}, {v(S_)}, {v(Q_)}\nv_max_f32 {v(Q_)}, 0, {v(Q_)}\nv_add_f32 {v(Q_)}, {lit(1e-5)}, {v(Q_)}")
        e(f"v_rsq_f32 {v(out)}, {v(Q_)}")
        if kind == "mean": e(f"v_mov_b32 {v(out+1)}, {v(S_)}")
        else: e(f"v_mul_f32_e64 {v(out+1)}, -{v(S_)}, {v(out)}")

    def uv_mfmas(self, part):
        e = self.e
        base, k0 = (self.WZ2, 0) if part else (self.WZ1, 2)
        e(f"v_and_b32 v8, 1, {v(vRho)}\nv_mul_u32_u24 v8, 896, v8\nv_lshlrev_b32 v9, 4, {v(vG)}\nv_sub_u32 v8, v9, v8\nv_add_u32 v8, {L_M + 1792}, v8")
        e.wait_bg(("win", part))
        self.gemm_loop(14, lambda st: [f"ds_read_b128 {v(self.MSR + (st % 3)*4, 4)}, v8 offset:{st*64}"],
                       lambda st: [f"{MF} {v(self.UVD + 4*(k0+tl), 4)}, {a(base + (tl*14+st)*4, 4)}, {v(self.MSR + (st % 3)*4, 4)}, {v(self.UVD + 4*(k0+tl), 4) if st else 0}" for tl in range(2)],
                       depth=2)

    def uv_extract(self, part):
        e = self.e
        k0 = 0 if part else 2
        for k in range(k0, k0+2):
            for r in range(4):
                e(f"v_mov_b32_dpp {v(self.UU+4*k+r)}, {v(self.UVD+4*k+r)} quad_perm:[0,0,2,2] row_mask:0xf bank_mask:0xf")
                e(f"v_mov_b32_dpp {v(self.VV+4*k+r)}, {v(self.UVD+4*k+r)} quad_perm:[1,1,3,3] row_mask:0xf bank_mask:0xf")

    def p4_head(self):
        e = self.e
        self.spoll("s62", "f3", fast=True)
        self.stamp("f3poll")
        e(f"s_lshl_b32 s82, {s(sCl)}, 2\ns_add_u32 s82, s82, {s(sW)}\ns_mul_i32 s82, s82, 14336\ns_add_u32 s82, s82, {WS_Y}")
        e(f"s_mul_i32 s83, {s(sW)}, 14336\ns_add_u32 m0, s83, {L_Y}")
        e(f"v_lshlrev_b32 v7, 10, {v(vG)}\nv_lshlrev_b32 v8, 3, {v(vRho)}\nv_add_u32 v7, v7, v8")
        e(f"s_lshl_b32 s84, {s(sCl)}, 12\ns_lshl_b32 s85, {s(sW)}, 7\ns_add_u32 s84, s84, s85\ns_add_u32 s84, s84, {WS_ST1}")
        e(f"buffer_load_dwordx2 v[204:205], v7, {srd(SWS)}, s84 offen sc1")
        t_s = e.vm(f"buffer_load_dwordx2 v[206:207], v7, {srd(SWS)}, s84 offen offset:512 sc1")
        for n in range(14):
            e(f"buffer_load_dwordx4 {v(vL16)}, {srd(SWS)}, s82 offen sc1 lds")
            if n < 13: e("s_add_u32 s82, s82, 1024\ns_add_u32 m0, m0, 1024")
        t_y = e.tvm()
        self.uv_mfmas(1)
        self.wsp_bg(0, 0); self.wsp_bg(1, 1)
        e.bg_flush()
        e.wait_vm(t_s)
        e("v_add_f32 v204, v204, v206\nv_add_f32 v205, v205, v207")
        self.allreduce_g2(204, 205, 5, 6, "add")
        self.stats_finish(204, 205, 448, 206, "mean")
        e(f"s_lshl_b32 s82, {s(sW)}, 7\ns_add_u32 s82, s82, {L_ST}\nv_lshlrev_b32 v7, 3, {v(vRho)}\nv_add_u32 v7, s82, v7")
        e("ds_write_b64 v7, v[206:207]")
        self.uv_extract(1)
        e.wait_vm(t_y)
        e.barrier()
        e(f"v_lshlrev_b32 v7, 3, {v(vRho)}\nv_add_u32 v7, {L_ST}, v7")
        for tt in range(4): e(f"ds_read_b64 {v(self.ST1R+2*tt,2)}, v7 offset:{tt*128}")

    def p4_gemm(self, part, tick_every, first=0, last=14):
        e = self.e
        base = self.WZ2 if part else self.WZ1
        A = self.A2 if part else self.A1
        e(f"v_add_u32 v7, {L_Y}, {v(vL16)}")
        self.gemm_loop(last, lambda st: [f"ds_read_b128 {v(self.YR + ((st % 3)*4 + tt)*4, 4)}, v7 offset:{tt*14336 + st*1024}" for tt in range(4)],
                       lambda st: [f"{MF} {v(A + (tl*4+tt)*4, 4)}, {a(base + (tl*14+st)*4, 4)}, {v(self.YR + ((st % 3)*4 + tt)*4, 4)}, {v(A + (tl*4+tt)*4, 4) if st else 0}"
                                   for tl in range(2) for tt in range(4)],
                       depth=2, tick_every=tick_every, first=first)

    def gelu_consts(self):
        e = self.e
        c = 2.0 * 0.7978845608028654 * 1.4426950408889634
        e(f"s_mov_b32 s68, {lit(-c*0.044715)}\ns_mov_b32 s69, {lit(-c)}\ns_mov_b32 s70, 1.0\ns_mov_b32 s71, 1.0")

    def p4_act(self, part, tick=True):
        e = self.e
        A = self.A2 if part else self.A1
        k0 = 0 if part else 2
        T = 208
        items = [(tl, tt) for tl in range(2) for tt in range(4)]
        for tl, tt in items:
            st = v(self.ST1R + 2*tt, 2)
            X = [v(A + (tl*4+tt)*4 + 2*q, 2) for q in range(2)]
            U = [v(self.UU + 4*(k0+tl) + 2*q, 2) for q in range(2)]
            V_ = [v(self.VV + 4*(k0+tl) + 2*q, 2) for q in range(2)]
            t = [T + 4*((tl*4+tt) & 1) + 2*q for q in range(2)]
            for q in range(2): e(f"v_pk_fma_f32 {X[q]}, {U[q]}, {st}, {X[q]} op_sel:[0,1,0] op_sel_hi:[1,1,1] neg_lo:[0,1,0] neg_hi:[0,1,0]")
            for q in range(2): e(f"v_pk_fma_f32 {X[q]}, {X[q]}, {st}, {V_[q]} op_sel:[0,0,0] op_sel_hi:[1,0,1]")
            for q in range(2): e(f"v_pk_mul_f32 {v(t[q],2)}, {X[q]}, {X[q]}")
            for q in range(2): e(f"v_pk_fma_f32 {v(t[q],2)}, {v(t[q],2)}, s[68:69], s[68:69] op_sel:[0,0,1] op_sel_hi:[1,0,1]")
            for q in range(2): e(f"v_pk_mul_f32 {v(t[q],2)}, {v(t[q],2)}, {X[q]}")
            for q in range(2): e(f"v_exp_f32 {v(t[q])}, {v(t[q])}\nv_exp_f32 {v(t[q]+1)}, {v(t[q]+1)}")
            if tick: e.tick()
            for q in range(2): e(f"v_pk_add_f32 {v(t[q],2)}, {v(t[q],2)}, s[70:71]")
            for q in range(2): e(f"v_rcp_f32 {v(t[q])}, {v(t[q])}\nv_rcp_f32 {v(t[q]+1)}, {v(t[q]+1)}")
            if tick: e.tick()
            for q in range(2): e(f"v_pk_mul_f32 {X[q]}, {X[q]}, {v(t[q],2)}")

    def p4_z2_stats(self):
        e = self.e
        A = self.A2
        SS, QQ = 208, 216
        for tt in range(4):
            S_, Q_ = v(SS+2*tt, 2), v(QQ+2*tt, 2)
            xs = [A + (tl*4+tt)*4 + 2*q for tl in range(2) for q in range(2)]
            e(f"v_pk_add_f32 {S_}, {v(xs[0],2)}, {v(xs[1],2)}\nv_pk_mul_f32 {Q_}, {v(xs[0],2)}, {v(xs[0],2)}")
            for x0, x1 in zip(xs[2:] + [None], xs[1:]):
                if x0 is not None: e(f"v_pk_add_f32 {S_}, {S_}, {v(x0,2)}")
                e(f"v_pk_fma_f32 {Q_}, {v(x1,2)}, {v(x1,2)}, {Q_}")
        for tt in range(4):
            e(f"v_add_f32 {v(SS+2*tt)}, {v(SS+2*tt)}, {v(SS+2*tt+1)}\nv_add_f32 {v(QQ+2*tt)}, {v(QQ+2*tt)}, {v(QQ+2*tt+1)}")
        self.reduce4(SS, SS+2, SS+4, SS+6)
        self.reduce4(QQ, QQ+2, QQ+4, QQ+6)
        e(f"v_mov_b32 {v(SS+1)}, {v(QQ)}")
        e(f"s_lshl_b32 s82, {s(sW)}, 9\ns_add_u32 s82, s82, {L_ST + 1024}\nv_lshlrev_b32 v7, 3, {v(vLane)}\nv_add_u32 v7, s82, v7")
        e(f"ds_write_b64 v7, {v(SS,2)}")
        e(f"v_lshlrev_b32 v7, 9, {v(vG)}\nv_lshlrev_b32 v8, 3, {v(vRho)}\nv_add_u32 v7, v7, v8\ns_lshl_b32 s82, {s(sW)}, 7\ns_add_u32 s82, s82, {L_ST + 1024}\nv_add_u32 v7, s82, v7")
        e(f"s_lshl_b32 s82, {s(sCl)}, 3\ns_add_u32 s82, s82, {s(sJ)}\ns_lshl_b32 s82, s82, 10\ns_lshl_b32 s83, {s(sW)}, 8\ns_add_u32 s82, s82, s83\ns_add_u32 s84, s82, {WS_ST2}")
        e(f"v_lshlrev_b32 v8, 4, {v(vRho)}")
        e.barrier()
        t = e.ds(f"ds_read_b64 {v(SS,2)}, v7")
        e.wait_lg(t)
        self.allreduce_g2(SS, SS+1, 5, 6, "add")
        e(f"v_mov_b32 {v(SS+2)}, {v(SS+1)}\nv_mov_b32 {v(SS+1)}, {s(sN)}\nv_mov_b32 {v(SS+3)}, {s(sN)}")
        e("s_mov_b32 exec_lo, 0xffff\ns_mov_b32 exec_hi, 0")
        e(f"buffer_store_dwordx4 {v(SS,4)}, v8, {srd(SWS)}, s84 offen sc1")
        e("s_mov_b64 exec, -1")

    def p4_z1_pack(self):
        e = self.e
        for tl in range(2):
            for tt in range(4):
                X = self.A1 + (tl*4+tt)*4
                P = self.Z1P + (tl*4+tt)*2
                e(f"v_cvt_pk_bf16_f32 {v(P)}, {v(X)}, {v(X+1)}\nv_cvt_pk_bf16_f32 {v(P+1)}, {v(X+2)}, {v(X+3)}")
        e(f"s_lshl_b32 s82, {s(sW)}, 12\ns_add_u32 s82, s82, {L_TR}\nv_add_u32 v7, s82, {v(vL16)}")
        for k in range(4): e(f"ds_write_b128 v7, {v(self.Z1P+4*k,4)} offset:{k*1024}")
        e.wait_lg(e.tlg())

    def p4_z2_publish(self):
        e = self.e
        e(f"v_lshlrev_b32 v7, 11, {v(vG)}\nv_lshlrev_b32 v8, 4, {v(vRho)}\nv_add_u32 v204, v7, v8")
        e(f"s_lshl_b32 s82, {s(sCl)}, 13\ns_lshl_b32 s83, {s(sW)}, 8\ns_add_u32 s82, s82, s83\ns_add_u32 s64, s82, {WS_ST2}")
        self.poll([(208, 4, 204, "s64", 0), (212, 4, 204, "s64", 1024)], [(209, None), (211, None), (213, None), (215, None)], stem="st2")
        self.stamp("st2poll")
        e("v_add_f32 v208, v208, v212\nv_add_f32 v209, v210, v214")
        self.allreduce_g2(208, 209, 5, 6, "add")
        self.stats_finish(208, 209, 896, 210, "nmr")
        e(f"s_lshl_b32 s82, {s(sW)}, 7\ns_add_u32 s82, s82, {L_ST + 512}\nv_lshlrev_b32 v7, 3, {v(vRho)}\nv_add_u32 v7, s82, v7")
        e("ds_write_b64 v7, v[210:211]")
        e(f"s_lshl_b32 s82, {s(sW)}, 12\ns_add_u32 s82, s82, {L_TR}")
        e(f"v_lshrrev_b32 v8, 2, {v(vRho)}\nv_xor_b32 v8, v8, {v(vG)}\nv_lshlrev_b32 v8, 3, v8\nv_lshlrev_b32 v9, 5, {v(vRho)}\nv_add_u32 v8, v8, v9\nv_add_u32 v8, s82, v8")
        e(f"v_lshrrev_b32 v9, 2, {v(vRho)}\nv_lshlrev_b32 v10, 2, {v(vG)}\nv_add_u32 v9, v9, v10\nv_lshlrev_b32 v9, 5, v9\nv_and_b32 v10, 3, {v(vRho)}\nv_xor_b32 v10, v10, {v(vG)}\nv_lshlrev_b32 v10, 3, v10\nv_add_u32 v9, v9, v10\nv_add_u32 v9, s82, v9")
        e(f"v_lshlrev_b32 v7, 3, {v(vRho)}\nv_add_u32 v7, {L_ST + 512}, v7")
        e.barrier()
        tks = [e.ds(f"ds_read_b64 {v(self.ST2R+2*tt,2)}, v7 offset:{tt*128}") for tt in range(4)]
        P = 208
        for tt in range(4):
            e.wait_lg(tks[tt])
            for tl in range(2):
                X = self.A2 + (tl*4+tt)*4
                st = v(self.ST2R + 2*tt, 2)
                for q in range(2):
                    e(f"v_pk_fma_f32 {v(X+2*q,2)}, {v(X+2*q,2)}, {st}, {st} op_sel:[0,0,1] op_sel_hi:[1,0,1]")
                p = P + 2*((tt*2+tl) % 4)
                e(f"v_cvt_pk_bf16_f32 {v(p)}, {v(X)}, {v(X+1)}\nv_cvt_pk_bf16_f32 {v(p+1)}, {v(X+2)}, {v(X+3)}")
                e(f"ds_write_b64 v8, {v(p,2)} offset:{(tl*4+tt)*512}")
        FR = 216
        e.wait_lg(e.tlg())
        tk = {}
        for tl in range(2):
            for b in range(2):
                for tau in range(2):
                    tk[tl, b] = e.ds(f"ds_read_b64_tr_b16 {v(FR + (tl*2+b)*4 + 2*tau, 2)}, v9 offset:{(tl*4 + 2*b + tau)*512}")
        for tl in range(2):
            e(f"s_lshl_b32 s82, {s(sJ)}, 6\ns_lshl_b32 s83, {s(sCl)}, 1\ns_add_u32 s82, s82, s83\ns_mul_i32 s82, s82, 7\ns_lshl_b32 s83, {s(sW)}, 1\ns_add_u32 s83, s83, {tl}\ns_add_u32 s82, s82, s83")
            e(f"s_lshl_b32 s82, s82, 10\ns_add_u32 s82, s82, {WS_Z}\ns_cmp_lt_u32 s83, 7\ns_cselect_b32 s82, s82, {OOB}\ns_add_u32 s84, s82, 7168")
            e.wait_lg(tk[tl, 0])
            e(f"buffer_store_dwordx4 {v(FR + (tl*2)*4, 4)}, {v(vL16)}, {srd(SWS)}, s82 offen sc1")
            e.wait_lg(tk[tl, 1])
            e(f"buffer_store_dwordx4 {v(FR + (tl*2+1)*4, 4)}, {v(vL16)}, {srd(SWS)}, s84 offen sc1")
        e(f"s_lshl_b32 s82, {s(sJ)}, 7\ns_lshl_b32 s83, {s(sCl)}, 2\ns_add_u32 s66, s82, s83\ns_add_u32 s66, s66, {WS_F5}")
        e(f"s_lshl_b32 s83, {s(sW)}, 5\ns_add_u32 s62, s82, s83\ns_add_u32 s62, s62, {WS_F5}")
        self.publish("s66", name="z", fast=False)

    A5, ZR, BSP, ZD = 16, 128, 240, 4
    Z1R = 144
    def wa(self, st): return (128 + 16*st) % 256
    def wsp_setup(self):
        e = self.e
        e(f"v_lshrrev_b32 v7, 5, {v(vLane)}\nv_lshlrev_b32 v7, 3, v7\nv_bfe_u32 v8, {v(vLane)}, 3, 2\nv_add_u32 v7, v7, v8\nv_lshlrev_b32 v7, 12, v7")
        e(f"v_and_b32 v12, 7, {v(vLane)}\nv_xor_b32 v12, v12, {v(vG)}\nv_xor_b32 v13, 4, v12\nv_lshlrev_b32 v12, 4, v12\nv_lshlrev_b32 v13, 4, v13")
        e("v_add_u32 v12, v7, v12\nv_add_u32 v13, v7, v13")
        e(f"s_lshl_b32 s72, {s(sCl)}, 18\ns_lshl_b32 s82, {s(sW)}, 10\ns_add_u32 s72, s72, s82")
        e(f"s_lshl_b32 s73, {s(sW)}, 13\ns_add_u32 s73, s73, {L_WSP}")
        e(f"v_lshrrev_b32 v14, 1, {v(vRho)}\nv_xor_b32 v14, v14, {v(vG)}\nv_xor_b32 v15, 4, v14\nv_lshlrev_b32 v14, 4, v14\nv_lshlrev_b32 v15, 4, v15")
        e(f"v_lshlrev_b32 v7, 7, {v(vRho)}\nv_add_u32 v14, v14, v7\nv_add_u32 v15, v15, v7\nv_add_u32 v14, s73, v14\nv_add_u32 v15, s73, v15")

    def wsp_bg(self, b, slot):
        e = self.e
        for rg in range(8):
            row = 32*(rg >> 2) + 16*(rg & 1) + 4*((rg >> 1) & 1)
            e.bg_add(("wsp", b), f"s_add_u32 m0, s73, {slot*32768 + rg*1024}\ns_add_u32 s81, s72, {row*4096 + 128*b}\nbuffer_load_dwordx4 {v(12 + (rg & 1))}, {srd(SWSP)}, s81 offen lds")

    def wsp_park(self, b, slot):
        e = self.e
        e.wait_bg(("wsp", b))
        t = None
        for sp in range(2):
            if slot >= 2: e(f"v_add_u32 v7, 65536, {v(14+sp)}")
            for tt in range(4):
                t = e.ds(f"ds_read_b128 {a(self.wa(2*b+sp) + 4*tt, 4)}, {v(7 if slot >= 2 else 14+sp)} offset:{(slot & 1)*32768 + tt*2048}")
        return t

    def bsp_loads(self):
        e = self.e
        e(f"v_lshrrev_b32 v6, 2, {v(vRho)}\nv_lshlrev_b32 v6, 3, v6\nv_and_b32 v7, 3, {v(vRho)}\nv_add_u32 v6, v6, v7\nv_lshlrev_b32 v6, 1, v6")
        e(f"s_lshl_b32 s82, {s(sCl)}, 7")
        for tt in range(4):
            e(f"buffer_load_ushort {v(self.BSP+tt)}, v6, {srd(SBSP)}, s82 offen offset:{2*(32*(tt>>1) + 4*(tt&1))}")

    def p5_main(self):
        e = self.e
        ZD = self.ZD
        e(f"s_lshl_b32 s82, {s(sJ)}, 6\ns_lshl_b32 s83, {s(sW)}, 4\ns_add_u32 s82, s82, s83\ns_mul_i32 s74, s82, 7168\ns_add_u32 s74, s74, {WS_Z}")
        self.spoll("s62", "f5")
        self.stamp("f5poll")
        e("v_add_u32 v10, 65536, v14\nv_add_u32 v11, 65536, v15")
        tz = {}
        def zgroups(st):
            out = []
            for t in range(7):
                pre = f"s_add_u32 s82, s74, {st*7168}\n" if t == 0 else (f"s_add_u32 s82, s74, {st*7168 + 4096}\n" if t == 4 else "")
                out.append(pre + f"buffer_load_dwordx4 {v(self.ZR + ((st % ZD)*7 + t)*4, 4)}, {v(vL16)}, {srd(SWS)}, s82 offen offset:{(t & 3)*1024} sc1")
            return out
        for st in range(ZD - 1):
            for g in zgroups(st): e(g)
            tz[st] = e.tvm()
        def mf(st, t, tt):
            D = v(self.A5 + (t*4+tt)*4, 4)
            return f"{MF} {D}, {v(self.ZR + ((st % ZD)*7 + t)*4, 4)}, {a(self.wa(st) + 4*tt, 4)}, {D if st else 0}"
        parks = []
        NT = int(self.o.get('nt5', 13))
        for st in range(NT):
            zs = zgroups(st + ZD - 1) if st + ZD - 1 < 16 else []
            e.wait_vm(tz[st])
            if st in (0, 2, 4, 6, 8, 10, 12): self.stamp(f"p5s{st}")
            if self.o.get("latepark"):
                if st in (5, 7, 9, 11):
                    b = 4 + (st - 5) // 2
                    parks = self.wsp_park_list(b, (2, 3, 0, 1)[b - 4])
                if st in (8, 10, 12): e.wait_lg(e.tlg())
            else:
                if st == 2: parks = self.wsp_park_list(4, 2) + self.wsp_park_list(5, 3)
                if st == 5: parks = self.wsp_park_list(6, 0) + self.wsp_park_list(7, 1)
                if st == 8: e.wait_lg(e.tlg())
                if st == 10 and not self.o.get("ownred"): e.barrier()
            k = 0
            for t in range(7):
                for tt in range(4):
                    e(mf(st, t, tt))
                    k += 1
                    if k % 4 == 1 and zs: e(zs.pop(0))
                    elif k % 2 == 0 and parks: e.ds(parks.pop(0))
                    elif k % 7 == 3 and e.bg_left(): e.tick()
            if st + ZD - 1 < 16: tz[st + ZD - 1] = e.tvm()
        assert not parks
        if self.o.get("latepark"): e.barrier()
        e.wait_vm(tz[15])
        self.stamp("p5s13")
        own = self.o.get("ownred")
        if own:
            e(f"s_lshl_b32 s82, {s(sW)}, 13\nv_add_u32 v7, s82, {v(vL16)}\nv_add_u32 v6, 65536, v7")
        else:
            e(f"s_mul_i32 s82, {s(sW)}, 28672\ns_add_u32 s82, s82, {L_RED}\nv_add_u32 v7, s82, {v(vL16)}")
        def wr(k):
            if own: return f"ds_write_b128 {v(6 if k >= 16 else 7)}, {v(self.A5 + 4*k, 4)} offset:{((k >> 3) & 1)*32768 + (k & 7)*1024}"
            return f"ds_write_b128 v7, {v(self.A5 + 4*k, 4)} offset:{k*1024}"
        pend = []
        self.wout_bg()
        nw = 20 if NT == 13 else 21
        if NT == 14: nw = 21
        for t in range(7):
            k = 0
            for st in range(NT, 16):
                for tt in range(4):
                    e(mf(st, t, tt))
                    if NT == 13: wslot, tslot = (k >= 5 and k % 2 == 1), k in (0, 2, 4)
                    else: wslot, tslot = k >= 4, k in (0, 1, 2)
                    if wslot and pend: e.ds(pend.pop(0))
                    elif tslot and nw > 0:
                        e.tick(); nw -= 1
                    k += 1
            pend = [wr(t*4+tt) for tt in range(4)]
        for w_ in pend: e.ds(w_)

    def wsp_park_list(self, b, slot):
        e = self.e
        e.wait_bg(("wsp", b))
        out = []
        for sp in range(2):
            for tt in range(4):
                out.append(f"ds_read_b128 {a(self.wa(2*b+sp) + 4*tt, 4)}, {v((10 if slot >= 2 else 14) + sp)} offset:{(slot & 1)*32768 + tt*2048}")
        return out

    def wout_bg(self):
        e = self.e
        e(f"s_mul_i32 s75, {s(sJ)}, 114688\ns_mul_i32 s83, {s(sW)}, 28672\ns_add_u32 s75, s75, s83\ns_add_u32 s75, s75, {WS_WOUT}")
        for k in range(7):
            for ft in range(4):
                e.bg_add("wout", f"s_add_u32 s81, s75, {k*4096}\nbuffer_load_dwordx4 {a((k*4+ft)*4, 4)}, {v(vL16)}, {srd(SWS)}, s81 offen offset:{ft*1024} sc1")

    def p5_epilogue(self):
        e = self.e
        e(f"s_lshl_b32 s82, {s(sW)}, 12\ns_add_u32 s82, s82, {L_TR}\nv_add_u32 v8, s82, {v(vL16)}")
        for k in range(4): e(f"ds_read_b128 {v(self.Z1R+4*k,4)}, v8 offset:{k*1024}")
        if self.o.get("ownred"):
            e(f"s_lshl_b32 s82, {s(sW)}, 15\nv_add_u32 v7, s82, {v(vL16)}")
        else:
            e(f"s_lshl_b32 s82, {s(sW)}, 13\ns_add_u32 s82, s82, {L_RED}\nv_add_u32 v7, s82, {v(vL16)}\nv_add_u32 v8, 57344, v7")
        for tt in range(4): e(f"v_lshlrev_b32 {v(self.BSP+tt)}, 16, {v(self.BSP+tt)}")
        e(f"v_and_b32 v9, 1, {v(vG)}\nv_mul_u32_u24 v9, 28672, v9\nv_lshrrev_b32 v10, 1, {v(vG)}\nv_lshlrev_b32 v10, 8, v10\nv_add_u32 v9, v9, v10\nv_lshlrev_b32 v10, 4, {v(vRho)}\nv_add_u32 v9, v9, v10")
        e.barrier()
        R = 16
        tk = {}
        def rd(idx):
            for src in range(4):
                if self.o.get("ownred"): tk[idx] = e.ds(f"ds_read_b128 {v(R + (idx*4+src)*4, 4)}, v7 offset:{src*8192 + idx*1024}")
                else: tk[idx] = e.ds(f"ds_read_b128 {v(R + (idx*4+src)*4, 4)}, {v(7 + (src >> 1))} offset:{(src & 1)*28672 + idx*1024}")
        order = [tl*4 + tt for tl in range(2) for tt in range(4)]
        for idx in order[:3]: rd(idx)
        Q = 216
        for n, idx in enumerate(order):
            tl, tt = idx >> 2, idx & 3
            if n + 3 < 8: rd(order[n+3])
            e.wait_lg(tk[idx])
            r = R + idx*16
            for q in range(2): e(f"v_pk_add_f32 {v(r+2*q,2)}, {v(r+2*q,2)}, {v(r+4+2*q,2)}\nv_pk_add_f32 {v(r+8+2*q,2)}, {v(r+8+2*q,2)}, {v(r+12+2*q,2)}")
            for q in range(2): e(f"v_pk_add_f32 {v(r+2*q,2)}, {v(r+2*q,2)}, {v(r+8+2*q,2)}")
            for q in range(2):
                z = self.Z1R + idx*2 + q
                e(f"v_lshlrev_b32 {v(r+4+2*q)}, 16, {v(z)}\nv_and_b32 {v(r+5+2*q)}, {s(sHI)}, {v(z)}")
            for k in range(4): e(f"v_add_f32 {v(r+k)}, {v(r+k)}, {v(self.BSP+tt)}")
            for q in range(2): e(f"v_pk_mul_f32 {v(r+2*q,2)}, {v(r+2*q,2)}, {v(r+4+2*q,2)}")
            for q in range(2): e(f"v_cvt_pk_bf16_f32 {v(Q + (tl*2 + (tt >> 1))*4 + 2*(tt & 1) + q)}, {v(r+2*q)}, {v(r+2*q+1)}")
            if tt & 1:
                b = tt >> 1
                if b == 0:
                    e(f"s_lshl_b32 s83, {s(sW)}, 1\ns_add_u32 s83, s83, {tl}\ns_mul_i32 s84, {s(sJ)}, 14\ns_lshl_b32 s85, s83, 1\ns_add_u32 s84, s84, s85\ns_lshl_b32 s84, s84, 8")
                    e(f"s_lshl_b32 s85, {s(sCl)}, 2\ns_mul_i32 s85, s85, 28672\ns_add_u32 s84, s84, s85\ns_add_u32 s84, s84, {WS_G}\ns_cmp_lt_u32 s83, 7\ns_cselect_b32 s84, s84, {OOB}\ns_add_u32 s85, s84, 57344")
                q = Q + (tl*2+b)*4
                e(f"v_permlane16_swap_b32 {v(q)}, {v(q+2)}\nv_permlane16_swap_b32 {v(q+1)}, {v(q+3)}")
                e(f"buffer_store_dwordx4 {v(q,4)}, v9, {srd(SWS)}, {('s84','s85')[b]} offen sc1")
        e(f"s_lshl_b32 s82, {s(sCl)}, 7\ns_add_u32 s62, s82, {WS_F6}\ns_lshl_b32 s83, {s(sJ)}, 2\ns_add_u32 s66, s62, s83")
        self.publish("s66", pre=int(self.o.get("g_pre", 8)), post=int(self.o.get("g_post", 0)), name="g")

    def p6(self):
        e = self.e
        GF, ACC = 16, 128
        e(f"s_lshl_b32 s82, {s(sCl)}, 2\ns_mul_i32 s82, s82, 28672\ns_mul_i32 s83, {s(sW)}, 7168\ns_add_u32 s82, s82, s83\ns_add_u32 s82, s82, {WS_G}")
        for tt in range(4): e(f"s_add_u32 {s(76+tt)}, s82, {tt*28672}")
        GB = 192
        e(f"v_lshlrev_b32 v8, 4, {v(vG)}\ns_mul_i32 s82, {s(sJ)}, 112\ns_add_u32 s82, s82, {L_M + 2688}\nv_add_u32 v8, s82, v8")
        e(f"ds_read_b128 {v(GB,4)}, v8\nds_read_b128 {v(GB+4,4)}, v8 offset:64")
        self.row_offset(9)
        self.spoll("s62", "f6", fast=True)
        self.stamp("f6poll")
        tg = {}
        for k in range(7):
            for tt in range(4):
                if k == 4: e(f"s_add_u32 {s(76+tt)}, {s(76+tt)}, 4096")
                tg[k] = e.vm(f"buffer_load_dwordx4 {v(GF + (k*4+tt)*4, 4)}, {v(vL16)}, {srd(SWS)}, {s(76+tt)} offen offset:{(k & 3)*1024} sc1")
        XU, GU = 200, 216
        for k in range(8):
            e(f"v_lshlrev_b32 {v(XU+2*k)}, 16, {v(self.X1+k)}\nv_and_b32 {v(XU+2*k+1)}, {s(sHI)}, {v(self.X1+k)}")
            e(f"v_lshlrev_b32 {v(GU+2*k)}, 16, {v(GB+k)}\nv_and_b32 {v(GU+2*k+1)}, {s(sHI)}, {v(GB+k)}")
        def mf(k, ft, tt):
            D = v(ACC + (ft*4+tt)*4, 4)
            return f"{MF} {D}, {a((k*4+ft)*4, 4)}, {v(GF + (k*4+tt)*4, 4)}, {D if k else 0}"
        for k in range(5):
            e.wait_vm(tg[k])
            for ft in range(4):
                for tt in range(4): e(mf(k, ft, tt))
        e(f"s_lshl_b32 s82, {s(sW)}, 14\ns_add_u32 s82, s82, {L_RED}\nv_add_u32 v7, s82, {v(vL16)}")
        e.wait_vm(tg[6])
        pend = []
        for ft in range(4):
            n = 0
            for k in (5, 6):
                for tt in range(4):
                    e(mf(k, ft, tt))
                    if n >= 4 and pend: e.ds(pend.pop(0))
                    n += 1
            pend = [f"ds_write_b128 v7, {v(ACC + (ft*4+tt)*4, 4)} offset:{(ft*4+tt)*1024}" for tt in range(4)]
        for w_ in pend: e.ds(w_)
        self.stamp("p6gemm")
        e(f"s_lshl_b32 s82, {s(sW)}, 10\ns_add_u32 s82, s82, {L_RED}\nv_add_u32 v7, s82, {v(vL16)}")
        e.barrier()
        R = 16
        tk = {}
        for ft in range(4):
            for src in range(4):
                tk[ft] = e.ds(f"ds_read_b128 {v(R + (ft*4+src)*4, 4)}, v7 offset:{src*16384 + ft*4096}")
        OP = 112
        for ft in range(4):
            e.wait_lg(tk[ft])
            r = R + ft*16
            for q in range(2): e(f"v_pk_add_f32 {v(r+2*q,2)}, {v(r+2*q,2)}, {v(r+4+2*q,2)}\nv_pk_add_f32 {v(r+8+2*q,2)}, {v(r+8+2*q,2)}, {v(r+12+2*q,2)}")
            for q in range(2): e(f"v_pk_add_f32 {v(r+2*q,2)}, {v(r+2*q,2)}, {v(r+8+2*q,2)}")
            for q in range(2):
                k = 2*ft + q
                e(f"v_pk_fma_f32 {v(r+2*q,2)}, {v(GU+2*k,2)}, {v(r+2*q,2)}, {v(XU+2*k,2)}")
            for q in range(2): e(f"v_cvt_pk_bf16_f32 {v(OP+2*ft+q)}, {v(r+2*q)}, {v(r+2*q+1)}")
            if ft == 1: e(f"buffer_store_dwordx4 {v(OP,4)}, v9, {srd(SOUT)}, s67 offen {self.o.get('ost', '').replace('_', ' ')}")
        e("s_mov_b32 exec_hi, 0x0000ffff")
        e(f"buffer_store_dwordx4 {v(OP+4,4)}, v9, {srd(SOUT)}, s67 offen offset:64 {self.o.get('ost', '').replace('_', ' ')}")
        e("s_mov_b32 exec_hi, -1")
        for k in range(int(self.o.get("dummy", 0))): e(f"v_fma_f32 v{16 + k % 8}, v30, v30, v{16 + k % 8}")
        self.stamp("end")
        self.stamps_out()
        e(f"s_add_u32 s82, s2, {s(sW)}\ns_cmp_eq_u32 s82, 0\ns_cbranch_scc0 L_end")
        e(f"v_mov_b32 v5, {s(sN)}\ns_mov_b64 exec, 1\nbuffer_store_dword v5, off, {srd(SWS)}, 0 sc1")

    def build(self):
        e = self.e
        S = self.stamp
        self.prologue()
        S("start")
        ke = int(self.o.get("kearly", 0))
        if self.o.get("xfirst"):
            t0 = e.tvm()
            self.x_dma()
            t1 = e.tvm()
            self.gemv_loads()
        else:
            self.gemv_loads()
            t0 = e.tvm()
            self.x_dma()
            t1 = t0
        ppa = self.o.get("ppafter")
        if not ppa:
            self.prepass_issue()
            t_pp_n = e.tvm()
        self.wqkv_setup()
        self.wqkv_bg(1, L_K, "wk")
        e.tick(ke)
        S("issued")
        self.nonce(e.tvm() - t0)
        self.gemv_compute(e.tvm() - t1)
        if ppa:
            e.wait_vm(self.t_x)
            self.prepass_issue()
            t_pp_n = e.tvm()
        S("gemv")
        late = self.o.get("pplate")
        if not late:
            t_pps = self.prepass_finish(t_pp_n)
            S("ppfin")
        e.wait_vm(self.t_x)
        if not late: e.barrier()
        if self.o.get("vin") == "ln": self.wqkv_bg(2, L_V, "wv")
        S("xland")
        self.ln1()
        if not late: self.prepass_flag(t_pps)
        S("ln1a")
        self.ln1_finish()
        e.bg_flush()
        S("ln1")
        if late: t_pps = self.prepass_finish(t_pp_n)
        self.mod_wait1()
        e.wait_bg("wk")
        e.barrier()
        S("modpoll")
        if self.o.get("vin") != "ln": self.wqkv_bg(2, L_V, "wv")
        self.modulate()
        e.bg_flush()
        if self.o.get("pplate"): self.prepass_flag(t_pps)
        e.barrier()
        S("modulate")
        self.h_read()
        self.kvq_setup()
        e.barrier()
        S("hread")
        self.wqkv_bg(0, L_X, "wq")
        acc = self.qkv_gemm("k", L_K)
        S("kloop")
        e.wait_bg("wv")
        e.barrier()
        self.k_epilogue(acc)
        S("kgemm")
        t_late = self.late_loads()
        acc = self.qkv_gemm("v", L_V)
        S("vloop")
        e.wait_bg("wq")
        e.barrier()
        self.v_epilogue(acc)
        t_vst = e.tvm()
        S("vgemm")
        acc = self.qkv_gemm("q", L_X)
        S("qloop")
        e.wait_vm(t_vst)
        self.flag_store("s61")
        self.late_check(t_late)
        self.q_epilogue(acc)
        S("qgemm")
        e.barrier()
        self.att_bias()
        e("s_sub_u32 s62, s61, 32")
        self.spoll("s62", "f1", blk="s59")
        S("kpoll")
        self.att_offsets()
        for key, txt in self.att_load_groups(0, 0, "k"):
            e.bg_add(key, txt); e.tick()
        for key, txt in self.att_load_groups(64, 2048, "v"): e.bg_add(key, txt)
        self.wo_bg()
        self.xslice_bg()
        self.att_scores()
        S("scores")
        self.att_softmax_pv(12)
        e.bg_flush()
        S("softmax")
        self.win_bg(1, 77)
        self.att_epilogue()
        S("opub")
        if self.end_if_stop("o"): return
        self.wsp_setup()
        bgq, e.bgq = e.bgq, []
        self.p3(bgq)
        S("ypub")
        if self.end_if_stop("y"): return
        e.bg_flush()
        self.gelu_consts()
        self.p4_head()
        S("p4head")
        self.win_bg(0, 77)
        self.p4_gemm(1, 4)
        e.bg_flush()
        S("z2gemm")
        self.wsp_park(0, 0); t = self.wsp_park(1, 1)
        self.p4_act(1, tick=False)
        S("z2act")
        self.p4_z2_stats()
        S("z2stats")
        e.wait_lg(t)
        self.wsp_bg(2, 0); self.wsp_bg(3, 1)
        self.uv_mfmas(0)
        split = int(self.o.get("z1split", 6))
        self.p4_gemm(0, 2 if split < 14 else 4, 0, split)
        e.bg_flush()
        S("z1a")
        self.p4_z2_publish()
        S("zpub")
        if self.end_if_stop("z"): return
        if split < 14: self.p4_gemm(0, 0, split, 14)
        self.uv_extract(0)
        self.wsp_park(2, 0); t = self.wsp_park(3, 1)
        e.barrier()
        S("z1gemm")
        self.wsp_bg(4, 2); self.wsp_bg(5, 3); self.wsp_bg(6, 0); self.wsp_bg(7, 1)
        self.p4_act(0)
        self.p4_z1_pack()
        self.bsp_loads()
        if self.o.get("defer67"): e.bg_flush(("wsp", 5))
        else: e.bg_flush()
        S("z1act")
        self.p5_main()
        S("p5main")
        self.p5_epilogue()
        S("gpub")
        if self.end_if_stop("g"): return
        e.bg_flush()
        self.p6()

    def text(self):
        self.build()
        body = self.e.text()
        if self.o.get("nt"):
            sel = {"x": SX, "qkv": SWQKV, "mod": SWMOD, "wo": SWO, "win": SWIN, "wout": SWOUT, "wsp": SWSP}
            want = sel.keys() if self.o["nt"] in (1, "1", "all") else self.o["nt"].split("+")
            out = []
            for ln in body.split("\n"):
                if "buffer_load" in ln and any(srd(sel[k]) in ln for k in want):
                    ln = ln.replace(" lds", " nt lds") if ln.endswith(" lds") else ln + " nt"
                out.append(ln)
            body = "\n".join(out)
        hdr = open(os.path.join(os.path.dirname(os.path.abspath(__file__)), "header.txt")).read()
        return hdr + f"""; @launch grid=(256,1,1) block=(256,1,1) lds={LDS_BYTES}
.amdgcn_target "amdgcn-amd-amdhsa--gfx950"
.text
.globl {NAME}
.p2align 8
.type {NAME},@function
{NAME}:
{body}L_end:
  s_endpgm
.section .rodata,"a"
.p2align 6
.amdhsa_kernel {NAME}
  .amdhsa_next_free_vgpr 512
  .amdhsa_next_free_sgpr 102
  .amdhsa_accum_offset 256
  .amdhsa_group_segment_fixed_size 0
  .amdhsa_kernarg_size 104
  .amdhsa_user_sgpr_count 2
  .amdhsa_user_sgpr_kernarg_segment_ptr 1
  .amdhsa_system_sgpr_workgroup_id_x 1
.end_amdhsa_kernel
"""

if __name__ == "__main__":
    stop = sys.argv[2] if len(sys.argv) > 2 and sys.argv[2] != "-" else None
    opts = dict(kv.split("=") if "=" in kv else (kv, 1) for kv in sys.argv[3:])
    g = Gen(stop=stop, opts=opts)
    open(sys.argv[1], "w").write(g.text())
    if opts.get("prof"): open(sys.argv[1] + ".stamps", "w").write(" ".join(g.stamps))
```

```python
import sys, struct, os
sys.path.insert(0, os.path.dirname(os.path.abspath(__file__)))
from emit import *
from layout import *

NAME = "adaLN_cond__sliding_block__mixer_gmlp__prompt_kernel"

DBG, SX, SWQKV, SWO, SWIN, SWSP, SBSP, SWOUT, SC, SWMOD, SOUT, SWS = 4, 8, 12, 16, 20, 24, 28, 32, 36, 40, 44, 48
sW, sCl, sJ, sN = 52, 53, 54, 55
sEX = 56
sHI = 100
sTO = 101
vLane, vL16, vRho, vG = 1, 2, 3, 4

def srd(r): return s(r, 4)
def fbits(x): return struct.unpack("<I", struct.pack("<f", x))[0]
def lit(x): return hex(fbits(x))
MF = "v_mfma_f32_16x16x32_bf16"
POLL_MAX = 1 << 17

class Gen:
    def __init__(self, stop=None, opts=None):
        self.e = E()
        self.stop = stop
        self.o = opts or {}
        self.stamps = []

    def stamp(self, name):
        if not self.o.get("prof"): return
        only = self.o.get("only")
        if only and name not in only.split("+") + ["start", "end"]: return
        e = self.e
        k = len(self.stamps); self.stamps.append(name)
        if self.o.get("prof") == "cyc": e("s_memtime s[92:93]\ns_waitcnt lgkmcnt(0)")
        else: e("s_memrealtime s[92:93]\ns_waitcnt lgkmcnt(0)")
        e(f"v_writelane_b32 v0, s92, {k}")

    def stamps_out(self):
        if not self.o.get("prof"): return
        e = self.e
        e(f"s_lshl_b32 s90, s2, 2\ns_add_u32 s90, s90, {s(sW)}\ns_lshl_b32 s90, s90, 8\ns_add_u32 s90, s90, {WS_DBG}")
        e(f"v_lshlrev_b32 v5, 2, {v(vLane)}")
        e(f"buffer_store_dword v0, v5, {srd(SWS)}, s90 offen")
        if self.o.get("dbgout"):
            L = e.label("dbgout")
            e(f"s_cmp_eq_u32 s2, {self.o['dbgout']}\ns_cbranch_scc0 {L}\ns_cmp_eq_u32 {s(sW)}, 0\ns_cbranch_scc0 {L}")
            e(f"v_readlane_b32 s90, v0, 0\nv_subrev_u32 v6, s90, v0\ns_mov_b32 exec_lo, 0xffff\ns_mov_b32 exec_hi, 0")
            e(f"buffer_store_dword v6, v5, {srd(DBG)}, 0 offen\ns_mov_b64 exec, -1")
            e(f"{L}:")

    def end_if_stop(self, name):
        if self.stop == name:
            self.e.bg_flush()
            self.e("s_waitcnt vmcnt(0) lgkmcnt(0)\ns_branch L_end")
            return True
        return False

    def timeout_mark(self):
        e = self.e
        e(f"v_mov_b32 v5, {e.nlabel}\nv_mov_b32 v6, 0")
        e(f"buffer_store_dword v5, v6, {srd(DBG)}, 0 offen")

    def poll(self, loads, checks, stem="poll"):
        e = self.e
        L, Lok = e.label(stem), e.label(stem + "ok")
        fixed = []
        k = 0
        for vd, n, va, so, off in loads:
            if isinstance(so, int):
                e(f"s_mov_b32 {s(92+k)}, {so}"); so = s(92+k); k += 1
            fixed.append((vd, n, va, so, off))
        assert k <= 4
        e(f"s_mov_b32 {s(sTO)}, 0")
        e(f"{L}:")
        st = e.snap()
        for vd, n, va, so, off in fixed:
            op = {1: "buffer_load_dword", 2: "buffer_load_dwordx2", 4: "buffer_load_dwordx4"}[n]
            e(f"{op} {v(vd, n)}, {v(va)}, {srd(SWS)}, {so} offen offset:{off} sc1")
        e("s_waitcnt vmcnt(0)")
        self.tags_differ([c for c, _ in checks])
        e(f"s_cmp_eq_u64 vcc, 0\ns_cbranch_scc1 {Lok}")
        e(f"s_add_u32 {s(sTO)}, {s(sTO)}, 1\ns_cmp_lt_u32 {s(sTO)}, {POLL_MAX}\ns_cbranch_scc1 {L}")
        self.timeout_mark()
        e(f"{Lok}:")
        e.restore(st)
        e.vm_done = e.vm_issued

    def tags_differ(self, regs):
        e = self.e
        for r in regs: e(f"v_xor_b32 {v(r)}, {s(sN)}, {v(r)}")
        acc, rest = regs[0], regs[1:]
        while rest:
            if len(rest) >= 2:
                e(f"v_or3_b32 {v(acc)}, {v(acc)}, {v(rest[0])}, {v(rest[1])}"); rest = rest[2:]
            else:
                e(f"v_or_b32 {v(acc)}, {v(acc)}, {v(rest[0])}"); rest = rest[1:]
        e(f"v_cmp_ne_u32 vcc, 0, {v(acc)}")

    def spoll(self, soff, stem, blk=None, fast=False):
        e = self.e
        if stem in self.o.get("vpoll", "").split("+"):
            return self.vpoll8(soff, stem, fast and self.o.get("fast"), blk)
        fast = fast and self.o.get("fast")
        L, Lok = e.label(stem), e.label(stem + "ok")
        e(f"s_add_u32 s96, {s(SWS)}, {soff}\ns_addc_u32 s97, {s(SWS+1)}, 0")
        e(f"s_mov_b32 s98, {s(sN)}\ns_mov_b32 s99, {s(sN)}\ns_mov_b32 {s(sTO)}, 0")
        e(f"{L}:")
        e("s_load_dwordx8 s[84:91], s[96:97], 0 glc")
        if fast: e(f"s_load_dwordx8 s[12:19], s[96:97], {WS_FAST - WS_F2} glc")
        e("s_waitcnt lgkmcnt(0)")
        for k in range(4): e(f"s_xor_b64 s[{84+2*k}:{85+2*k}], s[{84+2*k}:{85+2*k}], s[98:99]")
        if fast:
            for k in range(4): e(f"s_xor_b64 s[{12+2*k}:{13+2*k}], s[{12+2*k}:{13+2*k}], s[98:99]")
            for i in range(8): e(f"s_min_u32 {s(84+i)}, {s(84+i)}, {s(12+i)}")
        if blk:
            for i in range(8): e(f"s_add_u32 s82, {blk}, {i}\ns_cmp_ge_u32 s82, 8\ns_cselect_b32 {s(84+i)}, {s(84+i)}, 0")
        e("s_or_b64 s[84:85], s[84:85], s[86:87]\ns_or_b64 s[88:89], s[88:89], s[90:91]\ns_or_b64 s[84:85], s[84:85], s[88:89]")
        e(f"s_cmp_eq_u64 s[84:85], 0\ns_cbranch_scc1 {Lok}")
        e(f"s_add_u32 {s(sTO)}, {s(sTO)}, 1\ns_cmp_lt_u32 {s(sTO)}, {POLL_MAX}\ns_cbranch_scc1 {L}")
        st = e.snap()
        self.timeout_mark()
        e.restore(st)
        e(f"{Lok}:")

    def vpoll8(self, soff, stem, fast, blk=None):
        e = self.e
        L, Lok = e.label(stem), e.label(stem + "ok")
        one = stem in self.o.get("onepoll", "").split("+")
        if one: e(f"s_cmp_eq_u32 {s(sW)}, 3\ns_cbranch_scc0 {Lok}")
        e(f"v_and_b32 v5, 7, {v(vLane)}\nv_lshlrev_b32 v11, 2, v5")
        if fast: e(f"v_bfe_u32 v6, {v(vLane)}, 3, 1\nv_mul_u32_u24 v6, {WS_FAST - WS_F2}, v6\nv_add_u32 v11, v11, v6")
        if blk: e(f"s_sub_u32 s83, 8, {blk}\ns_max_i32 s83, s83, 0\ns_lshl_b32 s83, 1, s83\ns_sub_u32 s83, s83, 1")
        e(f"s_mov_b32 {s(sTO)}, 0")
        e(f"{L}:")
        st = e.snap()
        e(f"buffer_load_dword v10, v11, {srd(SWS)}, {soff} offen sc1\ns_waitcnt vmcnt(0)")
        e(f"v_cmp_eq_u32 vcc, {s(sN)}, v10")
        if fast: e(f"s_lshr_b32 s82, vcc_lo, 8\ns_or_b32 s82, s82, vcc_lo")
        else: e(f"s_mov_b32 s82, vcc_lo")
        if blk: e("s_or_b32 s82, s82, s83")
        e(f"s_and_b32 s82, s82, 0xff\ns_cmp_eq_u32 s82, 0xff\ns_cbranch_scc1 {Lok}")
        if self.o.get("psleep"): e(f"s_sleep {self.o['psleep']}")
        e(f"s_add_u32 {s(sTO)}, {s(sTO)}, 1\ns_cmp_lt_u32 {s(sTO)}, {POLL_MAX}\ns_cbranch_scc1 {L}")
        self.timeout_mark()
        e(f"{Lok}:")
        e.restore(st)
        if one: e("s_barrier")
        else: e.vm_done = e.vm_issued

    def flag_store(self, soff):
        e = self.e
        e(f"v_mov_b32 v5, {s(sN)}\ns_mov_b64 exec, 1")
        e(f"buffer_store_dword v5, off, {srd(SWS)}, {soff} sc1")
        e("s_mov_b64 exec, -1")

    def publish(self, soff, pre=0, post=0, name=None, fast=True):
        e = self.e
        t = e.tvm()
        if name: self.stamp(name + "_st")
        e.tick(pre)
        e.wait_vm(t)
        if name: self.stamp(name + "_dr")
        e.barrier()
        L = e.label("pub")
        st = e.snap()
        e(f"s_cmp_eq_u32 {s(sW)}, 0\ns_cbranch_scc0 {L}")
        if fast and self.o.get("fast"):
            e(f"s_add_u32 s82, {soff}, {WS_FAST - WS_F2}\nv_mov_b32 v5, {s(sN)}\ns_mov_b64 exec, 1")
            e(f"buffer_store_dword v5, off, {srd(SWS)}, s82")
            e(f"buffer_store_dword v5, off, {srd(SWS)}, {soff} sc1\ns_mov_b64 exec, -1")
        else:
            self.flag_store(soff)
        e(f"{L}:")
        e.restore(st)
        if name: self.stamp(name + "_fl")
        e.tick(post)

    def allreduce_g(self, r, tmp, op):
        e = self.e
        o = {"add": "v_add_f32", "max": "v_max_f32"}[op]
        e(f"v_mov_b32 {v(tmp)}, {v(r)}\nv_permlane32_swap_b32 {v(r)}, {v(tmp)}\n{o} {v(r)}, {v(r)}, {v(tmp)}")
        e(f"v_mov_b32 {v(tmp)}, {v(r)}\nv_permlane16_swap_b32 {v(r)}, {v(tmp)}\n{o} {v(r)}, {v(r)}, {v(tmp)}")

    def allreduce_g2(self, r0, r1, t0, t1, op):
        e = self.e
        o = {"add": "v_add_f32", "max": "v_max_f32"}[op]
        for sw in ("v_permlane32_swap_b32", "v_permlane16_swap_b32"):
            e(f"v_mov_b32 {v(t0)}, {v(r0)}\nv_mov_b32 {v(t1)}, {v(r1)}\n{sw} {v(r0)}, {v(t0)}\n{sw} {v(r1)}, {v(t1)}")
            e(f"{o} {v(r0)}, {v(r0)}, {v(t0)}\n{o} {v(r1)}, {v(r1)}, {v(t1)}")

    def gemm_loop(self, nsteps, reads, mfmas, depth=2, pre=None, tick_every=0, tick_max=10**9, first=0):
        e = self.e
        tk = {}
        for st in range(first, min(first + depth, nsteps)):
            for r in reads(st): tk[st] = e.ds(r)
        k = 0
        for st in range(first, nsteps):
            pend = list(reads(st + depth)) if st + depth < nsteps else []
            if pre: pre(st)
            e.wait_lg(tk.get(st))
            ms = mfmas(st)
            for n, m in enumerate(ms):
                e(m); k += 1
                if pend and (len(pend) >= len(ms) - n or n % max(1, len(ms) // max(1, len(reads(st + depth)))) == 0):
                    tk[st + depth] = e.ds(pend.pop(0))
                elif tick_every and k % tick_every == 0 and tick_max > 0 and e.bg_left():
                    e.tick(); tick_max -= 1
            for r in pend: tk[st + depth] = e.ds(r)

    def prologue(self):
        e = self.e
        e("s_cmp_ge_u32 s2, 256\ns_cbranch_scc1 L_end")
        e("s_load_dwordx16 s[56:71], s[0:1], 0\ns_load_dwordx8 s[72:79], s[0:1], 64\ns_load_dwordx2 s[80:81], s[0:1], 96")
        if not self.o.get("nopf"): self.code_prefetch()
        e(f"v_and_b32 {v(vLane)}, 63, v0\nv_lshrrev_b32 v5, 6, v0")
        e(f"v_readfirstlane_b32 {s(sW)}, v5")
        e(f"v_lshlrev_b32 {v(vL16)}, 4, {v(vLane)}\nv_and_b32 {v(vRho)}, 15, {v(vLane)}\nv_lshrrev_b32 {v(vG)}, 4, {v(vLane)}")
        if self.o.get("map", "b") == "b":
            e("s_and_b32 s82, s2, 7\ns_lshr_b32 s83, s82, 1\ns_and_b32 s84, s82, 1\ns_lshr_b32 s85, s2, 3")
            e(f"s_lshr_b32 s86, s85, 2\ns_lshl_b32 s83, s83, 3\ns_add_u32 {s(sCl)}, s83, s86")
            e(f"s_and_b32 s85, s85, 3\ns_lshl_b32 s84, s84, 2\ns_add_u32 {s(sJ)}, s84, s85")
        elif self.o.get("map") == "x":
            e(f"s_lshr_b32 {s(sCl)}, s2, 3\ns_and_b32 {s(sJ)}, s2, 7")
        else:
            e("s_and_b32 s82, s2, 7\ns_lshl_b32 s82, s82, 2\ns_lshr_b32 s85, s2, 3\ns_lshr_b32 s86, s85, 3")
            e(f"s_add_u32 {s(sCl)}, s82, s86\ns_and_b32 {s(sJ)}, s85, 7")
        e(f"s_mov_b32 {s(sHI)}, 0xffff0000")
        e("s_waitcnt lgkmcnt(0)")
        ptr = {SWS: (80, WS_SIZE), SC: (72, 896), SWMOD: (74, 2408448), SX: (56, 1835008), SWQKV: (58, 1204224), SWO: (60, 401408),
               SWIN: (64, 1605632), SWSP: (66, 8388608), SBSP: (68, 4096), SWOUT: (70, 802816), SOUT: (76, 1835008), DBG: (78, 256)}
        for r, (p, n) in ptr.items():
            e(f"s_mov_b32 {s(r)}, {s(p)}\ns_mov_b32 {s(r+1)}, {s(p+1)}\ns_mov_b32 {s(r+2)}, {n}\ns_mov_b32 {s(r+3)}, 0x20000")
        if self.o.get("wsoff"):
            e(f"s_add_u32 {s(SWS)}, {s(SWS)}, {int(self.o['wsoff'], 0)}\ns_addc_u32 {s(SWS+1)}, {s(SWS+1)}, 0")
        self.t_epoch = e.vm(f"buffer_load_dword v6, off, {srd(SWS)}, 0 sc1")

    def code_prefetch(self):
        e = self.e
        lo, hi = int(self.o.get("pf_lo", 240)), int(self.o.get("pf_hi", 256))
        st = e.snap()
        e(f"s_sub_u32 s82, s2, {lo}\ns_cmp_lt_u32 s82, {hi - lo}\ns_cbranch_scc0 L_nopf")
        e("s_getpc_b64 s[84:85]\nL_pf_pc:")
        e(f"s_sub_u32 s84, s84, L_pf_pc-{NAME}\ns_subb_u32 s85, s85, 0")
        e("v_lshlrev_b32 v5, 7, v0")
        e(f"s_mov_b32 s83, L_end-{NAME}")
        for k in range(2):
            e(f"v_add_u32 v6, {k*32768}, v5\nv_min_u32 v6, s83, v6\nglobal_load_dword a255, v6, s[84:85]")
        e("L_nopf:")
        e.restore(st)

    def nonce(self, nyounger):
        e = self.e
        e(f"s_waitcnt vmcnt({nyounger})")
        e("v_readfirstlane_b32 s82, v6")
        e(f"s_mul_i32 s82, s82, 0x9E3779B1\ns_add_u32 {s(sN)}, s82, 0x7F4A7C15")

    GW, GC, GA = 16, 44, 52
    def gemv_loads16(self):
        e = self.e
        GW, GC = self.GW, self.GC
        st = e.snap()
        e("s_sub_u32 s63, s2, 200\ns_sub_u32 s82, s2, 32\ns_cmp_ge_u32 s2, 200\ns_cselect_b32 s63, s63, s82")
        e("s_cmp_ge_u32 s2, 88\ns_cbranch_scc0 L_nogemv_ld")
        e(f"v_lshrrev_b32 v7, 1, {v(vLane)}\nv_mul_u32_u24 v8, 5376, v7\nv_and_b32 v9, 1, {v(vLane)}\nv_lshlrev_b32 v9, 4, v9\nv_add_u32 v8, v8, v9")
        e("v_lshlrev_b32 v7, 1, v7")
        e(f"s_mul_i32 s82, {s(sW)}, {112*5376}\ns_lshl_b32 s83, s63, 5\ns_add_u32 s82, s82, s83\ns_mul_i32 s83, {s(sW)}, 224")
        for n in range(4):
            e(f"buffer_load_dwordx4 {v(GW+4*n,4)}, v8, {srd(SWMOD)}, s82 offen")
            if n < 3: e(f"s_add_u32 s82, s82, {32*5376}")
        for n in range(4):
            e(f"buffer_load_ushort {v(GC+n)}, v7, {srd(SC)}, s83 offen offset:{64*n}")
        e("L_nogemv_ld:")
        e.restore(st)

    def gemv_compute16(self, nyounger):
        e = self.e
        GW, GC, GA = self.GW, self.GC, self.GA
        st = e.snap()
        e("s_cmp_ge_u32 s2, 88\ns_cbranch_scc0 L_nogemv")
        e(f"s_waitcnt vmcnt({min(nyounger, 63)})")
        for n in range(4): e(f"v_lshlrev_b32 {v(GC+n)}, 16, {v(GC+n)}")
        for n in range(4): e(f"v_mul_f32 {v(60+n)}, {lit(-1.4426950408889634)}, {v(GC+n)}")
        for n in range(4): e(f"v_exp_f32 {v(60+n)}, {v(60+n)}")
        for n in range(4): e(f"v_add_f32 {v(60+n)}, 1.0, {v(60+n)}")
        for n in range(4): e(f"v_rcp_f32 {v(60+n)}, {v(60+n)}")
        for n in range(4): e(f"v_mul_f32 {v(60+n)}, {v(60+n)}, {v(GC+n)}")
        for n in range(4): e(f"v_cvt_pk_bf16_f32 {v(60+n)}, {v(60+n)}, {v(60+n)}")
        e(f"v_cmp_gt_u32 vcc, 32, {v(vLane)}\nv_cndmask_b32 v63, 0, v63, vcc")
        e("s_mov_b32 s94, 0x05040100\ns_mov_b32 s95, 0x07060302")
        for n in (0, 2): e(f"v_perm_b32 {v(GC+n)}, {v(60+n+1)}, {v(60+n)}, s94")
        for n in (0, 2):
            for q in range(4):
                w0, w1 = GW + 4*n + q, GW + 4*(n+1) + q
                e(f"v_perm_b32 v68, {v(w1)}, {v(w0)}, s94\nv_perm_b32 v69, {v(w1)}, {v(w0)}, s95")
                for h_, t_ in ((0, 68), (1, 69)):
                    acc = v(GA+2*q+h_)
                    e(f"v_dot2_f32_bf16 {acc}, {v(t_)}, {v(GC+n)}, {acc if n else 0}")
        for rot in (2, 4, 8):
            for k in range(8):
                e(f"v_add_f32_dpp {v(GA+k)}, {v(GA+k)}, {v(GA+k)} row_ror:{rot} row_mask:0xf bank_mask:0xf")
        e(f"v_lshlrev_b32 v60, 6, {v(vG)}\nv_and_b32 v61, 1, {v(vLane)}\nv_lshlrev_b32 v61, 5, v61\nv_add_u32 v60, v60, v61")
        e(f"s_lshl_b32 s82, {s(sW)}, 8\ns_add_u32 s82, s82, {L_GS}\nv_add_u32 v60, s82, v60")
        e(f"ds_write_b128 v60, {v(GA,4)}\nds_write_b128 v60, {v(GA+4,4)} offset:16")
        e("s_waitcnt lgkmcnt(0)\ns_barrier")
        e(f"s_cmp_eq_u32 {s(sW)}, 0\ns_cbranch_scc0 L_nogemv")
        e(f"v_lshlrev_b32 v60, 2, {v(vRho)}\nv_lshlrev_b32 v61, 8, {v(vG)}\nv_add_u32 v60, v60, v61\nv_add_u32 v60, {L_GS}, v60")
        for p in range(4): e(f"ds_read_b32 {v(GA+p)}, v60 offset:{p*64}")
        e("s_sub_u32 s82, s63, 28\ns_cmp_lt_u32 s82, 28\ns_cselect_b32 s83, 1, 0\ns_sub_u32 s82, s63, 112\ns_cmp_lt_u32 s82, 28\ns_cselect_b32 s83, 1, s83")
        e("s_waitcnt lgkmcnt(0)")
        e(f"v_add_f32 {v(GA)}, {v(GA)}, {v(GA+1)}\nv_add_f32 {v(GA+2)}, {v(GA+2)}, {v(GA+3)}\nv_add_f32 {v(GA)}, {v(GA)}, {v(GA+2)}")
        self.allreduce_g(GA, 61, "add")
        e(f"v_cvt_pk_bf16_f32 v60, {v(GA)}, {v(GA)}\nv_lshlrev_b32 v60, 16, v60")
        e("s_cmp_eq_u32 s83, 1\ns_cbranch_scc0 L_gemv_noplus")
        e("v_add_f32 v60, 1.0, v60\nv_cvt_pk_bf16_f32 v60, v60, v60\nv_lshlrev_b32 v60, 16, v60")
        e("L_gemv_noplus:")
        e("v_mov_b32_dpp v61, v60 quad_perm:[1,0,3,2] row_mask:0xf bank_mask:0xf")
        e(f"v_cvt_pk_bf16_f32 v62, v60, v61\nv_mov_b32 v63, {s(sN)}")
        e(f"v_lshlrev_b32 v60, 2, {v(vRho)}")
        e(f"s_lshl_b32 s82, s63, 6\ns_add_u32 s82, s82, {WS_MODG}")
        e("s_mov_b32 exec_lo, 0x5555\ns_mov_b32 exec_hi, 0")
        e(f"buffer_store_dwordx2 v[62:63], v60, {srd(SWS)}, s82 offen sc1")
        e("s_mov_b64 exec, -1")
        e("L_nogemv:")
        e.restore(st)

    def gemv_loads(self):
        if self.o.get("g16"): return self.gemv_loads16()
        e = self.e
        GW, GC = self.GW, self.GC
        st = e.snap()
        e("s_sub_u32 s63, s2, 228\ns_sub_u32 s82, s2, 144\ns_cmp_ge_u32 s2, 228\ns_cselect_b32 s63, s63, s82")
        e("s_cmp_ge_u32 s2, 172\ns_cbranch_scc0 L_nogemv_ld")
        e(f"v_lshrrev_b32 v7, 2, {v(vLane)}\nv_mul_u32_u24 v8, 5376, v7\nv_and_b32 v9, 3, {v(vLane)}\nv_lshlrev_b32 v9, 4, v9\nv_add_u32 v8, v8, v9")
        e("v_lshlrev_b32 v7, 1, v7")
        e(f"s_mul_i32 s82, {s(sW)}, {112*5376}\ns_lshl_b32 s83, s63, 6\ns_add_u32 s82, s82, s83\ns_mul_i32 s83, {s(sW)}, 224")
        for n in range(7):
            e(f"buffer_load_dwordx4 {v(GW+4*n,4)}, v8, {srd(SWMOD)}, s82 offen")
            if n < 6: e(f"s_add_u32 s82, s82, {16*5376}")
        for n in range(7):
            e(f"buffer_load_ushort {v(GC+n)}, v7, {srd(SC)}, s83 offen offset:{32*n}")
        e("L_nogemv_ld:")
        e.restore(st)

    def x_dma(self, cb0=0, cb1=7):
        e = self.e
        if cb0 == 0:
            e(f"v_lshrrev_b32 v7, 5, {v(vLane)}\nv_lshlrev_b32 v7, 3, v7\nv_bfe_u32 v8, {v(vLane)}, 3, 2\nv_add_u32 v7, v7, v8\nv_mul_u32_u24 v7, 896, v7")
            e(f"v_and_b32 v8, 7, {v(vLane)}\nv_xor_b32 v8, v8, {v(vG)}\nv_xor_b32 v9, 4, v8\nv_lshlrev_b32 v8, 4, v8\nv_lshlrev_b32 v9, 4, v9")
            e("v_add_u32 v8, v7, v8\nv_add_u32 v9, v7, v9")
            e(f"s_lshl_b32 s77, {s(sCl)}, 6\ns_lshr_b32 s83, {s(sW)}, 1\ns_lshl_b32 s83, s83, 5\ns_add_u32 s77, s77, s83\ns_and_b32 s83, {s(sW)}, 1\ns_lshl_b32 s83, s83, 2\ns_add_u32 s77, s77, s83")
            e(f"s_mul_i32 s77, s77, 896\ns_lshl_b32 s78, {s(sW)}, 11\ns_add_u32 s78, s78, {L_X}")
            self.t_xcb = {}
        for cb in range(cb0, cb1):
            for par in range(2):
                e(f"s_add_u32 m0, s78, {cb*8192 + par*1024}\ns_add_u32 s83, s77, {par*16*896 + cb*128}")
                e(f"buffer_load_dwordx4 {v(8+par)}, {srd(SX)}, s83 offen lds")
            self.t_xcb[cb] = e.tvm()
        self.t_x = e.tvm()

    def w7_lane(self, dst, stride):
        e = self.e
        e(f"v_mul_u32_u24 v10, 37, {v(vLane)}\nv_lshrrev_b32 v10, 8, v10\nv_mul_u32_u24 v11, 7, v10\nv_sub_u32 v11, {v(vLane)}, v11\nv_lshlrev_b32 v11, 4, v11")
        e(f"v_mul_u32_u24 v10, {stride}, v10\nv_add_u32 {v(dst)}, v10, v11")

    vWo = 12
    def wqkv_setup(self):
        e = self.e
        self.w7_lane(self.vWo, 2688)
        e(f"s_mul_i32 s75, {s(sW)}, {112*2688}\ns_mul_i32 s82, {s(sJ)}, 112\ns_add_u32 s75, s75, s82\ns_mul_i32 s76, {s(sW)}, {112*112}")

    def wqkv_bg(self, T, lbase, key):
        e = self.e
        for n in range(14):
            e.bg_add(key, f"s_add_u32 s81, s75, {T*896 + n*8*2688}\ns_add_u32 m0, s76, {lbase + n*896}\ns_mov_b32 exec_hi, 0x00ffffff\nbuffer_load_dwordx4 {v(self.vWo)}, {srd(SWQKV)}, s81 offen lds\ns_mov_b32 exec_hi, -1")

    L_PP = L_V + 50176 - 16384
    def pp_slot(self):
        e = self.e
        if self.o.get("g16"):
            e(f"s_lshl_b32 s86, s2, 2\ns_add_u32 s86, s86, {s(sW)}")
            e(f"s_sub_u32 s87, s2, 88\ns_lshl_b32 s88, s87, 1\ns_add_u32 s88, s88, {s(sW)}\ns_add_u32 s88, s88, 351")
            e(f"s_add_u32 s87, s87, 688\ns_cmp_lt_u32 s87, 768\ns_cselect_b32 s87, s87, 9999\ns_cmp_eq_u32 {s(sW)}, 0\ns_cselect_b32 s88, s87, s88")
            e(f"s_cmp_eq_u32 {s(sW)}, 3\ns_cselect_b32 s88, 9999, s88\ns_cmp_lt_u32 s2, 88\ns_cselect_b32 s86, s86, s88")
        elif self.o.get("ppmix"):
            e(f"s_lshl_b32 s86, s2, 2\ns_add_u32 s86, s86, {s(sW)}\ns_add_u32 s87, s2, {688 - 172}\ns_cmp_eq_u32 {s(sW)}, 1\ns_cselect_b32 s87, s87, 9999")
            e("s_cmp_lt_u32 s2, 172\ns_cselect_b32 s86, s86, s87")
        elif self.o.get("pplate"):
            e(f"s_mul_i32 s86, s2, 3\ns_add_u32 s86, s86, {s(sW)}\ns_cmp_lt_u32 {s(sW)}, 3\ns_cselect_b32 s86, s86, 9999")
        else:
            e(f"s_lshl_b32 s86, s2, 2\ns_add_u32 s86, s86, {s(sW)}")

    def prepass_issue(self):
        e = self.e
        st = e.snap()
        self.pp_slot()
        e(f"s_mul_i32 s87, {s(sW)}, 4096\ns_add_u32 s87, s87, {self.L_PP}")
        e("s_mov_b32 m0, s87")
        e("s_cmp_lt_u32 s86, 392\ns_cbranch_scc0 L_pp_not_win_i")
        e(f"s_mul_hi_u32 s82, s86, {(1<<32)//28+1}\ns_mul_i32 s83, s82, 28\ns_sub_u32 s83, s86, s83")
        e(f"v_lshrrev_b32 v10, 3, {v(vLane)}\nv_mul_u32_u24 v10, 3584, v10\nv_and_b32 v11, 7, {v(vLane)}\nv_lshlrev_b32 v11, 4, v11\nv_add_u32 v10, v10, v11")
        e(f"s_mul_i32 s84, s82, {32*3584}\ns_lshl_b32 s85, s83, 7\ns_add_u32 s84, s84, s85")
        for n in range(4):
            e(f"buffer_load_dwordx4 v10, {srd(SWIN)}, s84 offen lds")
            if n < 3: e(f"s_add_u32 s84, s84, {8*3584}\ns_add_u32 m0, m0, 1024")
        e("s_branch L_pp_issued")
        e("L_pp_not_win_i:")
        e("s_cmp_lt_u32 s86, 744\ns_cbranch_scc0 L_pp_issued")
        self.w7_lane(13, 896)
        e("s_mov_b32 exec_hi, 0x00ffffff")
        e("s_cmp_lt_u32 s86, 520\ns_cbranch_scc0 L_pp_wout_i")
        e("s_sub_u32 s82, s86, 392\ns_lshr_b32 s83, s82, 4\ns_and_b32 s82, s82, 15")
        e(f"s_mul_i32 s84, s82, {28*896}\ns_mul_i32 s85, s83, 112\ns_add_u32 s84, s84, s85")
        for n in range(4):
            e(f"buffer_load_dwordx4 v13, {srd(SWO)}, s84 offen lds")
            if n < 3: e(f"s_add_u32 s84, s84, {8*896}\ns_add_u32 m0, m0, 896")
        e("s_branch L_pp_issued7")
        e("L_pp_wout_i:")
        e(f"s_sub_u32 s82, s86, 520\ns_mul_hi_u32 s83, s82, {(1<<32)//28+1}\ns_mul_i32 s84, s83, 28\ns_sub_u32 s82, s82, s84")
        e(f"s_mul_i32 s84, s82, {32*896}\ns_mul_i32 s85, s83, 112\ns_add_u32 s84, s84, s85")
        for n in range(4):
            e(f"buffer_load_dwordx4 v13, {srd(SWOUT)}, s84 offen lds")
            if n < 3: e(f"s_add_u32 s84, s84, {8*896}\ns_add_u32 m0, m0, 896")
        e("L_pp_issued7:")
        e("s_mov_b32 exec_hi, -1")
        e("L_pp_issued:")
        e.restore(st)

    def prepass_finish(self, t_after):
        e = self.e
        e.wait_vm(t_after, force=True)
        st = e.snap()
        R = self.PPR
        self.pp_slot()
        e(f"s_cmp_lt_u32 s86, 744\ns_cbranch_scc0 L_pp_done")
        e(f"s_mul_i32 s87, {s(sW)}, 4096\ns_add_u32 s87, s87, {self.L_PP}")
        e(f"v_lshrrev_b32 v10, 2, {v(vRho)}\nv_and_b32 v11, 3, {v(vRho)}")
        e("s_cmp_lt_u32 s86, 392\ns_cbranch_scc0 L_pp_not_win_f")
        e(f"s_mul_hi_u32 s82, s86, {(1<<32)//28+1}\ns_mul_i32 s83, s82, 28\ns_sub_u32 s83, s86, s83")
        e(f"v_lshlrev_b32 v14, 3, {v(vG)}\nv_add_u32 v14, v14, v10\nv_lshlrev_b32 v14, 7, v14\nv_lshlrev_b32 v11, 3, v11\nv_add_u32 v14, v14, v11\nv_add_u32 v14, s87, v14")
        for q in range(4):
            for par in range(2):
                e(f"ds_read_b64_tr_b16 {v(R+4*q+2*par,2)}, v14 offset:{par*512 + q*32}")
        for q in range(4):
            e(f"s_lshl_b32 s84, s83, 2\ns_add_u32 s84, s84, {q}\ns_cmp_ge_u32 s84, 56\ns_cselect_b32 s85, 1, 0\ns_mul_i32 s88, s85, 56\ns_sub_u32 s84, s84, s88")
            e(f"s_mul_i32 s88, s84, 37\ns_lshr_b32 s88, s88, 8\ns_mul_i32 s89, s88, 7\ns_sub_u32 s84, s84, s89")
            e(f"s_lshl_b32 s88, s88, 1\ns_add_u32 s88, s88, s85\ns_lshl_b32 s88, s88, 3\ns_add_u32 s88, s88, s84\ns_mul_i32 s88, s88, 14\ns_add_u32 s88, s88, s82")
            e(f"s_lshl_b32 s88, s88, 10\ns_add_u32 s88, s88, {WS_WIN}")
            if q == 0: e("s_waitcnt lgkmcnt(0)")
            e(f"buffer_store_dwordx4 {v(R+4*q,4)}, {v(vL16)}, {srd(SWS)}, s88 offen sc1")
        e("s_branch L_pp_done")
        e("L_pp_not_win_f:")
        e("s_cmp_lt_u32 s86, 744\ns_cbranch_scc0 L_pp_done")
        e(f"v_cmp_gt_u32 vcc, 12, {v(vRho)}\nv_cndmask_b32 v15, 0, -1, vcc")
        e("s_cmp_lt_u32 s86, 520\ns_cbranch_scc0 L_pp_wout_f")
        e("s_sub_u32 s88, s86, 392")
        e(f"v_lshlrev_b32 v14, 2, {v(vG)}\nv_add_u32 v14, v14, v10\nv_mul_u32_u24 v14, 112, v14\nv_lshlrev_b32 v11, 4, v11\nv_add_u32 v14, v14, v11\nv_add_u32 v14, s87, v14")
        for ft in range(4):
            for par in range(2):
                e(f"ds_read_b64_tr_b16 {v(R+4*ft+2*par,2)}, v14 offset:{par*16*112 + 64*(ft>>1) + 8*(ft&1)}")
        e(f"v_cmp_gt_u32 vcc, 3, {v(vG)}\nv_cndmask_b32 v13, 0, -1, vcc")
        e("s_waitcnt lgkmcnt(0)")
        for ft in range(4):
            e(f"v_and_b32 {v(R+4*ft+2)}, v13, {v(R+4*ft+2)}\nv_and_b32 {v(R+4*ft+3)}, v13, {v(R+4*ft+3)}")
        e(f"s_lshl_b32 s88, s88, 12\ns_add_u32 s88, s88, {WS_WO}")
        e("s_branch L_pp_st7")
        e("L_pp_wout_f:")
        e("s_sub_u32 s88, s86, 520")
        e(f"v_lshlrev_b32 v14, 3, {v(vG)}\nv_add_u32 v14, v14, v10\nv_mul_u32_u24 v14, 112, v14\nv_lshlrev_b32 v11, 4, v11\nv_add_u32 v14, v14, v11\nv_add_u32 v14, s87, v14")
        for ft in range(4):
            for par in range(2):
                e(f"ds_read_b64_tr_b16 {v(R+4*ft+2*par,2)}, v14 offset:{par*4*112 + 64*(ft>>1) + 8*(ft&1)}")
        e("s_waitcnt lgkmcnt(0)")
        e(f"s_lshl_b32 s88, s88, 12\ns_add_u32 s88, s88, {WS_WOUT}")
        e("L_pp_st7:")
        for ft in (2, 3):
            for k in range(4): e(f"v_and_b32 {v(R+4*ft+k)}, v15, {v(R+4*ft+k)}")
        for ft in range(4):
            e(f"buffer_store_dwordx4 {v(R+4*ft,4)}, {v(vL16)}, {srd(SWS)}, s88 offen offset:{ft*1024} sc1")
        e("L_pp_done:")
        e.restore(st)
        return e.tvm()

    def prepass_flag(self, t_after):
        e = self.e
        e.wait_vm(t_after, force=True)
        st = e.snap()
        self.pp_slot()
        e(f"s_cmp_lt_u32 s86, 768\ns_cbranch_scc0 L_pp_flagged")
        e(f"s_lshl_b32 s88, s86, 2\ns_add_u32 s88, s88, {WS_FW}")
        self.flag_store("s88")
        e("L_pp_flagged:")
        e.restore(st)

    def gemv_compute(self, nyounger):
        if self.o.get("g16"): return self.gemv_compute16(nyounger)
        e = self.e
        GW, GC, GA = self.GW, self.GC, self.GA
        st = e.snap()
        e("s_cmp_ge_u32 s2, 172\ns_cbranch_scc0 L_nogemv")
        e(f"s_waitcnt vmcnt({min(nyounger, 63)})")
        if int(self.o.get("xsplit", 7)) < 7: self.nonce(min(nyounger, 63))
        for n in range(7):
            c = GC + n
            e(f"v_lshlrev_b32 {v(c)}, 16, {v(c)}")
        for n in range(7): e(f"v_mul_f32 {v(60+n)}, {lit(-1.4426950408889634)}, {v(GC+n)}")
        for n in range(7): e(f"v_exp_f32 {v(60+n)}, {v(60+n)}")
        for n in range(7): e(f"v_add_f32 {v(60+n)}, 1.0, {v(60+n)}")
        for n in range(7): e(f"v_rcp_f32 {v(60+n)}, {v(60+n)}")
        for n in range(7): e(f"v_mul_f32 {v(60+n)}, {v(60+n)}, {v(GC+n)}")
        for n in range(7): e(f"v_cvt_pk_bf16_f32 {v(60+n)}, {v(60+n)}, {v(60+n)}")
        if self.o.get("gdot"):
            e("s_mov_b32 s94, 0x05040100\ns_mov_b32 s95, 0x07060302")
            for n in range(0, 6, 2): e(f"v_perm_b32 {v(GC+n)}, {v(60+n+1)}, {v(60+n)}, s94")
            e(f"v_and_b32 {v(GC+6)}, 0xffff, v66")
            for n in range(0, 7, 2):
                for q in range(4):
                    w0 = GW + 4*n + q
                    w1 = GW + 4*(n+1) + q if n < 6 else w0
                    e(f"v_perm_b32 v68, {v(w1)}, {v(w0)}, s94\nv_perm_b32 v69, {v(w1)}, {v(w0)}, s95")
                    for h_, t_ in ((0, 68), (1, 69)):
                        acc = v(GA+2*q+h_)
                        e(f"v_dot2_f32_bf16 {acc}, {v(t_)}, {v(GC+n)}, {acc if n else 0}")
        else:
            for n in range(7): e(f"v_lshlrev_b32 {v(GC+n)}, 16, {v(60+n)}")
            for n in range(7):
                for q in range(4):
                    w = GW + 4*n + q
                    e(f"v_lshlrev_b32 v60, 16, {v(w)}\nv_and_b32 v61, {s(sHI)}, {v(w)}")
                    if n == 0: e(f"v_mul_f32 {v(GA+2*q)}, v60, {v(GC+n)}\nv_mul_f32 {v(GA+2*q+1)}, v61, {v(GC+n)}")
                    else: e(f"v_fmac_f32 {v(GA+2*q)}, v60, {v(GC+n)}\nv_fmac_f32 {v(GA+2*q+1)}, v61, {v(GC+n)}")
        for rot in (4, 8):
            for k in range(8):
                e(f"v_add_f32_dpp {v(GA+k)}, {v(GA+k)}, {v(GA+k)} row_ror:{rot} row_mask:0xf bank_mask:0xf")
        e(f"v_lshlrev_b32 v60, 7, {v(vG)}\nv_and_b32 v61, 3, {v(vLane)}\nv_lshlrev_b32 v61, 5, v61\nv_add_u32 v60, v60, v61")
        e(f"s_lshl_b32 s82, {s(sW)}, 9\ns_add_u32 s82, s82, {L_GS}\nv_add_u32 v60, s82, v60")
        e(f"ds_write_b128 v60, {v(GA,4)}\nds_write_b128 v60, {v(GA+4,4)} offset:16")
        e("s_waitcnt lgkmcnt(0)\ns_barrier")
        e(f"s_cmp_eq_u32 {s(sW)}, {0 if self.o.get('ppmix') else 3}\ns_cbranch_scc0 L_nogemv")
        e(f"v_and_b32 v60, 31, {v(vLane)}\nv_lshlrev_b32 v60, 2, v60\nv_lshrrev_b32 v61, 5, {v(vLane)}\nv_lshlrev_b32 v61, 10, v61\nv_add_u32 v60, v60, v61\nv_add_u32 v60, {L_GS}, v60")
        for p in range(8): e(f"ds_read_b32 {v(GA+p)}, v60 offset:{p*128}")
        e("s_waitcnt lgkmcnt(0)")
        for p in range(1, 8): e(f"v_add_f32 {v(GA)}, {v(GA)}, {v(GA+p)}")
        e(f"v_mov_b32 v61, {v(GA)}\nv_permlane32_swap_b32 {v(GA)}, v61\nv_add_f32 {v(GA)}, {v(GA)}, v61")
        e(f"v_cvt_pk_bf16_f32 v60, {v(GA)}, {v(GA)}\nv_lshlrev_b32 v60, 16, v60")
        e("s_sub_u32 s82, s63, 14\ns_cmp_lt_u32 s82, 14\ns_cselect_b32 s83, 1, 0\ns_sub_u32 s82, s63, 56\ns_cmp_lt_u32 s82, 14\ns_cselect_b32 s83, 1, s83")
        e("s_cmp_eq_u32 s83, 1\ns_cbranch_scc0 L_gemv_noplus")
        e("v_add_f32 v60, 1.0, v60\nv_cvt_pk_bf16_f32 v60, v60, v60\nv_lshlrev_b32 v60, 16, v60")
        e("L_gemv_noplus:")
        e("v_mov_b32_dpp v61, v60 quad_perm:[1,0,3,2] row_mask:0xf bank_mask:0xf")
        e(f"v_cvt_pk_bf16_f32 v62, v60, v61\nv_mov_b32 v63, {s(sN)}")
        e(f"v_and_b32 v60, 31, {v(vLane)}\nv_lshlrev_b32 v60, 2, v60")
        e(f"s_lshl_b32 s82, s63, 7\ns_add_u32 s82, s82, {WS_MODG}")
        e("s_mov_b32 exec_lo, 0x55555555\ns_mov_b32 exec_hi, 0")
        e(f"buffer_store_dwordx2 v[62:63], v60, {srd(SWS)}, s82 offen sc1")
        e("s_mov_b64 exec, -1")
        e("L_nogemv:")
        e.restore(st)

    XB = 16
    PPR = 128
    def XR(self, st): return self.XB + st*8
    AS, AQ = 248, 250
    def ln1(self):
        e = self.e
        AS, AQ = self.AS, self.AQ
        e(f"v_lshrrev_b32 v6, 1, {v(vRho)}\nv_xor_b32 v6, v6, {v(vG)}\nv_xor_b32 v7, 4, v6\nv_lshlrev_b32 v6, 4, v6\nv_lshlrev_b32 v7, 4, v7")
        e(f"v_lshlrev_b32 v9, 7, {v(vRho)}\nv_add_u32 v6, v6, v9\nv_add_u32 v7, v7, v9")
        e(f"s_lshl_b32 s82, {s(sW)}, 11\ns_add_u32 s82, s82, {L_X}")
        e("v_add_u32 v6, s82, v6\nv_add_u32 v7, s82, v7")
        tk = {}
        def rd(st):
            e.wait_vm(self.t_xcb[st >> 1])
            tk[st] = e.ds(f"ds_read_b128 {v(self.XR(st)+4,4)}, {v(6+(st&1))} offset:{(st>>1)*8192}")
        for st in range(4): rd(st)
        for st in range(14):
            if st + 4 < 14: rd(st + 4)
            e.wait_lg(tk[st])
            X = self.XR(st)
            for q in range(4): e(f"v_lshlrev_b32 {v(X+q)}, 16, {v(X+4+q)}")
            for q in range(4): e(f"v_and_b32 {v(X+4+q)}, {s(sHI)}, {v(X+4+q)}")
            e.tick()
            for q in range(4):
                if st == 0 and q == 0:
                    e(f"v_pk_add_f32 {v(AS,2)}, {v(X,2)}, {v(X+2,2)}\nv_pk_mul_f32 {v(AQ,2)}, {v(X,2)}, {v(X,2)}")
                else:
                    if not (st == 0 and q == 1): e(f"v_pk_add_f32 {v(AS,2)}, {v(AS,2)}, {v(X+2*q,2)}")
                    e(f"v_pk_fma_f32 {v(AQ,2)}, {v(X+2*q,2)}, {v(X+2*q,2)}, {v(AQ,2)}")

    def ln1_finish(self):
        e = self.e
        AS, AQ = self.AS, self.AQ
        e(f"v_add_f32 {v(AS)}, {v(AS)}, {v(AS+1)}\nv_add_f32 {v(AQ)}, {v(AQ)}, {v(AQ+1)}")
        self.allreduce_g2(AS, AQ, 6, 7, "add")
        self.stats_finish(AS, AQ, 448, 252, "nmr")
        for st in range(14):
            X = self.XR(st)
            for q in range(4):
                e(f"v_pk_fma_f32 {v(X+2*q,2)}, {v(X+2*q,2)}, v[252:253], v[252:253] op_sel:[0,0,1] op_sel_hi:[1,0,1]")

    def mod_wait1(self):
        e = self.e
        st = e.snap()
        e(f"s_cmp_eq_u32 {s(sW)}, 3\ns_cbranch_scc0 L_mod1_skip")
        R, AD = 240, 128
        e(f"v_add_u32 v7, 192, {v(vLane)}\nv_min_u32 v7, 223, v7\nv_lshlrev_b32 v8, 4, v7")
        for i in range(4):
            t, u, x, y = 132, 133, 134, 135
            if i < 3: e(f"v_add_u32 {v(t)}, {64*i}, {v(vLane)}")
            else: e(f"v_mov_b32 {v(t)}, v7")
            e(f"v_cmp_gt_u32 vcc, 112, {v(t)}\nv_subrev_u32 {v(u)}, 112, {v(t)}\nv_cndmask_b32 {v(u)}, {v(u)}, {v(t)}, vcc")
            e(f"v_cndmask_b32 {v(y)}, 0, 8, vcc")
            e(f"v_and_b32 {v(x)}, 1, {v(u)}\nv_lshlrev_b32 {v(x)}, 2, {v(x)}\nv_add_u32 {v(y)}, {v(y)}, {v(x)}\nv_lshlrev_b32 {v(y)}, 4, {v(y)}")
            e(f"v_bfe_u32 {v(x)}, {v(u)}, 1, 2\nv_lshlrev_b32 {v(x)}, 8, {v(x)}\nv_add_u32 {v(y)}, {v(y)}, {v(x)}")
            e(f"v_bfe_u32 {v(x)}, {v(u)}, 3, 2\nv_lshlrev_b32 {v(x)}, 2, {v(x)}\nv_add_u32 {v(y)}, {v(y)}, {v(x)}")
            e(f"v_lshrrev_b32 {v(x)}, 5, {v(u)}\nv_lshlrev_b32 {v(x)}, 10, {v(x)}\nv_add_u32 {v(y)}, {v(y)}, {v(x)}\nv_add_u32 {v(AD+i)}, {L_M}, {v(y)}")
        self.poll([(R, 4, vL16, WS_MODG, 0), (R+4, 4, vL16, WS_MODG, 1024), (R+8, 4, vL16, WS_MODG, 2048), (R+12, 4, 8, WS_MODG, 0)],
                  [(R+1, None), (R+3, None), (R+5, None), (R+7, None), (R+9, None), (R+11, None), (R+13, None), (R+15, None)], stem="mod1")
        for i in range(4):
            r = R + 4*i
            e(f"v_and_b32 {v(r+1)}, {s(sHI)}, {v(r)}\nv_and_b32 {v(r+3)}, {s(sHI)}, {v(r+2)}\nv_lshlrev_b32 {v(r)}, 16, {v(r)}\nv_lshlrev_b32 {v(r+2)}, 16, {v(r+2)}")
            for k in range(4): e(f"ds_write_b32 {v(AD+i)}, {v(r+k)} offset:{16*k}")
        e("s_waitcnt lgkmcnt(0)")
        e("L_mod1_skip:")
        e.restore(st)

    def modulate(self):
        e = self.e
        MS, T = 128, 144
        e(f"v_add_u32 v7, {L_M}, {v(vL16)}")
        tk = [e.ds(f"ds_read_b128 {v(MS+4*k,4)}, v7 offset:{k*1024}") for k in range(4)]
        e(f"s_lshl_b32 s82, {s(sW)}, 11\ns_add_u32 s82, s82, {L_X}\nv_add_u32 v6, s82, {v(vL16)}")
        perm = [0, 2, 4, 6, 1, 3, 5, 7]
        for st in range(14):
            if st % 4 == 0: e.wait_lg(tk[st >> 2])
            X, R = self.XR(st), MS + st
            t = T + 8*(st & 1)
            for p in range(8): e(f"v_mov_b32_dpp {v(t+p)}, {v(R)} row_newbcast:{8+perm[p]} row_mask:0xf bank_mask:0xf")
            for p in range(8): e(f"v_fmac_f32_dpp {v(t+p)}, {v(R)}, {v(X+p)} row_newbcast:{perm[p]} row_mask:0xf bank_mask:0xf")
            e.tick()
            for q in range(4): e(f"v_cvt_pk_bf16_f32 {v(X+q)}, {v(t+2*q)}, {v(t+2*q+1)}")
            e(f"ds_write_b128 v6, {v(X,4)} offset:{(st>>1)*8192 + (st&1)*1024}")

    HB = 16
    def HR(self, st, tau): return self.HB + (st*2 + tau)*4
    def h_read(self):
        e = self.e
        e(f"s_lshr_b32 s82, {s(sW)}, 1\ns_lshl_b32 s82, s82, 12\ns_add_u32 s82, s82, {L_X}\nv_add_u32 v7, s82, {v(vL16)}")
        for st in range(14):
            for tau in range(2):
                e(f"ds_read_b128 {v(self.HR(st,tau),4)}, v7 offset:{(st>>1)*8192 + tau*2048 + (st&1)*1024}")

    ACC = {"k": 128, "v": 144, "q": 160}
    RING = 176
    def qkv_gemm(self, which, lbase, tick_every=0, hook=None):
        e = self.e
        base = self.ACC[which]
        acc = [[base, base+4], [base+8, base+12]]
        if which == "k":
            e(f"v_lshrrev_b32 v8, 2, {v(vRho)}\nv_lshlrev_b32 v8, 1, v8\nv_lshlrev_b32 v6, 3, {v(vG)}\nv_add_u32 v6, v6, v8\nv_mul_u32_u24 v6, 112, v6")
            e(f"v_and_b32 v8, 3, {v(vRho)}\nv_lshlrev_b32 v8, 3, v8\nv_add_u32 v6, v6, v8")
            e(f"s_and_b32 s82, {s(sW)}, 1\ns_mul_i32 s82, s82, 56\nv_add_u32 v6, s82, v6")
        e(f"v_add_u32 v7, {lbase}, v6")
        def reads(st):
            return [f"ds_read_b64_tr_b16 {v(self.RING + (st % 4)*8 + 4*td + 2*par, 2)}, v7 offset:{st*3584 + par*112 + 32*td}"
                    for td in range(2) for par in range(2)]
        def mfmas(st):
            out = []
            for tau in range(2):
                for td in range(2):
                    w, h = v(self.RING + (st % 4)*8 + 4*td, 4), v(self.HR(st, tau), 4)
                    A, B = (h, w) if which == "v" else (w, h)
                    out.append(f"{MF} {v(acc[tau][td],4)}, {A}, {B}, {v(acc[tau][td],4) if st else 0}")
            return out
        def pre(st):
            e.tick()
            if hook: hook(st)
        self.gemm_loop(14, reads, mfmas, depth=3, pre=pre)
        return acc

    def KF(self, tau): return 208 + 4*tau
    def VF(self, td): return 216 + 4*td
    def QF(self, tau): return 224 + 4*tau
    def kvq_setup(self):
        e = self.e
        e(f"s_and_b32 s82, {s(sW)}, 1\ns_lshl_b32 s83, {s(sJ)}, 1\ns_add_u32 s58, s83, s82")
        e(f"s_lshr_b32 s82, {s(sW)}, 1\ns_lshl_b32 s83, {s(sCl)}, 1\ns_add_u32 s59, s83, s82")
        e(f"s_lshl_b32 s82, s58, 6\ns_add_u32 s82, s82, s59\ns_lshl_b32 s60, s82, 12\ns_add_u32 s60, s60, {WS_KV}")
        e(f"s_lshl_b32 s61, s82, 2\ns_add_u32 s61, s61, {WS_F1K}")
        e(f"v_cmp_gt_u32 vcc, 3, {v(vG)}\nv_cndmask_b32 v13, 0, -1, vcc")
        e(f"v_cmp_gt_u32 vcc, 12, {v(vRho)}\nv_cndmask_b32 v14, 0, -1, vcc")
        e(f"v_cmp_eq_u32 vcc, 12, {v(vRho)}\nv_mov_b32 v15, 0x3f803f80\nv_cndmask_b32 v15, 0, v15, vcc")

    def k_epilogue(self, acc):
        e = self.e
        for tau in range(2):
            for td in range(2):
                A = acc[tau][td]
                e(f"v_cvt_pk_bf16_f32 {v(self.KF(tau)+2*td)}, {v(A)}, {v(A+1)}\nv_cvt_pk_bf16_f32 {v(self.KF(tau)+2*td+1)}, {v(A+2)}, {v(A+3)}")
            e(f"v_and_b32 {v(self.KF(tau)+2)}, v13, {v(self.KF(tau)+2)}\nv_and_b32 {v(self.KF(tau)+3)}, v13, {v(self.KF(tau)+3)}")
            e(f"buffer_store_dwordx4 {v(self.KF(tau),4)}, {v(vL16)}, {srd(SWS)}, s60 offen offset:{tau*1024} sc1")

    def v_epilogue(self, acc):
        e = self.e
        for td in range(2):
            for tau in range(2):
                A = acc[tau][td]
                e(f"v_cvt_pk_bf16_f32 {v(self.VF(td)+2*tau)}, {v(A)}, {v(A+1)}\nv_cvt_pk_bf16_f32 {v(self.VF(td)+2*tau+1)}, {v(A+2)}, {v(A+3)}")
            if td == 1:
                for k in range(4): e(f"v_and_or_b32 {v(self.VF(1)+k)}, {v(self.VF(1)+k)}, v14, v15")
            e(f"buffer_store_dwordx4 {v(self.VF(td),4)}, {v(vL16)}, {srd(SWS)}, s60 offen offset:{(2+td)*1024} sc1")

    def q_epilogue(self, acc):
        e = self.e
        e(f"s_mov_b32 s82, {lit(QSCALE)}")
        for tau in range(2):
            for td in range(2):
                A = acc[tau][td]
                for k in range(4): e(f"v_mul_f32 {v(A+k)}, s82, {v(A+k)}")
                e(f"v_cvt_pk_bf16_f32 {v(self.QF(tau)+2*td)}, {v(A)}, {v(A+1)}\nv_cvt_pk_bf16_f32 {v(self.QF(tau)+2*td+1)}, {v(A+2)}, {v(A+3)}")
            e(f"v_and_b32 {v(self.QF(tau)+2)}, v13, {v(self.QF(tau)+2)}\nv_and_b32 {v(self.QF(tau)+3)}, v13, {v(self.QF(tau)+3)}")

    SB, OB = 16, 160
    def SR(self, i, tq): return self.SB + (i*2 + tq)*8
    def OR_(self, td, tq): return self.OB + (td*2 + tq)*4
    def att_bias(self):
        e = self.e
        e(f"v_lshrrev_b32 v5, 2, {v(vRho)}\nv_sub_u32 v5, v5, {v(vG)}\nv_lshlrev_b32 v5, 3, v5\nv_and_b32 v6, 3, {v(vRho)}\nv_add_u32 v5, v5, v6")
        e(f"v_mov_b32 v6, {lit(-1e30)}\nv_mov_b32 v7, 0")
        for tq in range(2):
            for tk in range(2):
                for r in range(4):
                    e(f"v_cmp_le_i32 {s(82+2*r,2)}, {4*(tk-tq)+r}, v5")
                for r in range(4):
                    e(f"v_cndmask_b32 {v(self.SR(8,tq)+4*tk+r)}, v6, v7, {s(82+2*r,2)}")
                    e(f"v_cndmask_b32 {v(self.SR(0,tq)+4*tk+r)}, v7, v6, {s(82+2*r,2)}")
        if self.o.get("smax") in (1, "1"):
            for i in range(8):
                e(f"s_add_u32 s82, s59, {i}\ns_cmp_ge_u32 s82, 8\ns_cselect_b32 s83, 0, {lit(-1e30)}")
                for r in range(16):
                    if i == 0: e(f"v_min_f32 {v(self.SR(0,0)+r)}, s83, {v(self.SR(0,0)+r)}")
                    else: e(f"v_mov_b32 {v(self.SR(i,0)+r)}, s83")

    FWR, M2R = 232, (244, 248)
    def late_loads(self):
        e = self.e
        e(f"s_lshl_b32 s82, {s(sW)}, 6\nv_add_u32 v10, s82, {v(vLane)}\nv_min_u32 v10, 223, v10\nv_lshlrev_b32 v9, 4, v10")
        e(f"s_mov_b32 s92, {WS_FW}\ns_mov_b32 s93, {WS_MODG + 3584}")
        for k in range(3): e(f"buffer_load_dwordx4 {v(self.FWR+4*k,4)}, {v(vL16)}, {srd(SWS)}, s92 offen offset:{k*1024} sc1")
        e(f"buffer_load_dwordx4 {v(self.M2R[0],4)}, v9, {srd(SWS)}, s93 offen sc1")
        e(f"buffer_load_dwordx4 {v(self.M2R[1],4)}, v9, {srd(SWS)}, s93 offen offset:3584 sc1")
        return e.tvm()

    def late_check(self, t):
        e = self.e
        e.wait_vm(t)
        chk = [self.FWR + k for k in range(12)] + [self.M2R[0]+1, self.M2R[0]+3, self.M2R[1]+1, self.M2R[1]+3]
        Lok = e.label("lateok")
        self.tags_differ(chk)
        if self.o.get("forcelate"): e("s_cmp_eq_u32 s2, 9999")
        else: e(f"s_cmp_eq_u64 vcc, 0")
        e(f"s_cbranch_scc1 {Lok}")
        st = e.snap()
        self.poll([(self.FWR, 4, vL16, WS_FW, 0), (self.FWR+4, 4, vL16, "s92", 1024), (self.FWR+8, 4, vL16, "s92", 2048),
                   (self.M2R[0], 4, 9, WS_MODG + 3584, 0), (self.M2R[1], 4, 9, "s93", 3584)], [(c, None) for c in chk], stem="late")
        e.restore(st)
        e(f"{Lok}:")
        A, B = self.M2R
        e(f"v_lshlrev_b32 v10, 3, v10\nv_add_u32 v10, {L_M}, v10")
        e(f"v_mov_b32 {v(A+1)}, {v(A+2)}\nv_mov_b32 {v(B+1)}, {v(B+2)}")
        e(f"ds_write_b64 v10, {v(A,2)}\nds_write_b64 v10, {v(B,2)} offset:1792")

    def att_load_groups(self, abase, off, key):
        out = []
        for i in range(8):
            for t in range(2):
                out.append(((key, i*2+t), f"buffer_load_dwordx4 {a(abase + (i*2+t)*4, 4)}, {v(vL16)}, {srd(SWS)}, {s(84+i)} offen offset:{off + t*1024} sc1"))
        return out

    def att_offsets(self):
        e = self.e
        for i in range(8):
            e(f"s_add_u32 s82, s59, {i}\ns_sub_u32 s83, s60, {(8-i)*4096}\ns_cmp_ge_u32 s82, 8\ns_cselect_b32 {s(84+i)}, s83, {OOB}")

    def att_scores(self):
        e = self.e
        smax = self.o.get("smax")
        if smax == "2":
            Ls, Lj = e.label("attslow"), e.label("attjoin")
            e(f"s_cmp_ge_u32 s59, 8\ns_cbranch_scc0 {Ls}")
            st, q, t = e.snap(), list(e.bgq), dict(e.bgt)
            self.att_scores_path(True, False)
            e(f"s_branch {Lj}")
            fast = e.snap()
            e.restore(st); e.bgq, e.bgt = q, t
            e(f"{Ls}:")
            self.att_scores_path(False, False)
            self.att_max_chains()
            assert e.vm_issued == fast[0]
            e.vm_done = min(e.vm_done, fast[1])
            e(f"{Lj}:")
        else:
            self.att_scores_path(bool(smax), bool(smax))

    def att_max_chains(self):
        e = self.e
        M = [176, 178]
        chains = []
        for tq in range(2):
            regs = [self.SR(i, tq) + r for i in [8] + list(range(8)) for r in range(8)]
            c = [f"v_max3_f32 {v(M[tq])}, {v(regs[0])}, {v(regs[1])}, {v(regs[2])}", f"v_max_f32 {v(M[tq])}, {v(M[tq])}, {v(regs[3])}"]
            c += [f"v_max3_f32 {v(M[tq])}, {v(M[tq])}, {v(regs[k])}, {v(regs[k+1])}" for k in range(4, 72, 2)]
            chains.append(c)
        k = 0
        for x, y in zip(*chains):
            e(x); e(y); k += 1

    def att_scores_path(self, runmax, cinit):
        e = self.e
        M = [176, 178]
        def maxops(i, first):
            out = []
            for k in range(4):
                for tq in range(2):
                    B = self.SR(i, tq)
                    if first and k == 0: out.append(f"v_max3_f32 {v(M[tq])}, {v(B)}, {v(B+1)}, {v(B+2)}")
                    elif first and k == 3: out.append(f"v_max_f32 {v(M[tq])}, {v(M[tq])}, {v(B+7)}")
                    elif first: out.append(f"v_max3_f32 {v(M[tq])}, {v(M[tq])}, {v(B+2*k+1)}, {v(B+2*k+2)}")
                    else: out.append(f"v_max3_f32 {v(M[tq])}, {v(M[tq])}, {v(B+2*k)}, {v(B+2*k+1)}")
            return out
        prev = None
        for i in [8] + list(range(8)):
            for t in range(2):
                if i < 8: e.wait_vm(e.bgt["k", i*2+t])
                A = v(self.KF(t), 4) if i == 8 else a((i*2+t)*4, 4)
                for tq in range(2):
                    D = v(self.SR(i, tq) + 4*t, 4)
                    e(f"{MF} {D}, {A}, {v(self.QF(tq),4)}, {D if (cinit or i in (0, 8)) else 0}")
                if i < 8: e.tick()
            if runmax:
                if prev is not None:
                    for x in maxops(prev, prev == 8): e(x)
                prev = i
        if runmax:
            for x in maxops(prev, False): e(x)
            return
        Ln = e.label("attnofix")
        e(f"s_cmp_ge_u32 s59, 8\ns_cbranch_scc1 {Ln}")
        e(f"v_mov_b32 v6, {lit(-1e30)}")
        for i in range(8):
            e(f"s_add_u32 s82, s59, {i}\ns_cmp_ge_u32 s82, 8\ns_cbranch_scc1 {Ln}")
            for r in range(16): e(f"v_mov_b32 {v(self.SR(i,0)+r)}, v6")
        e(f"{Ln}:")

    def att_softmax_pv(self, ntick):
        e = self.e
        M = [176, 178]
        if not self.o.get("smax"): self.att_max_chains()
        self.allreduce_g2(M[0], M[1], 5, 6, "max")
        units = [(i, tq) for i in [8] + list(range(8)) for tq in range(2)]
        first = set()
        def pv(u):
            i, tq = u
            out = []
            for td in range(2):
                A = v(self.VF(td), 4) if i == 8 else a(64 + (i*2+td)*4, 4)
                O = v(self.OR_(td, tq), 4)
                c = O if (td, tq) in first else "0"
                first.add((td, tq))
                out.append((None if i == 8 else ("v", i*2+td), f"{MF} {O}, {A}, {v(self.SR(i,tq),4)}, {c}"))
            return out
        def emit_pv(item):
            key, txt = item
            if key is not None: e.wait_bg(key)
            e(txt)
        prev = None
        for n, u in enumerate(units):
            i, tq = u
            B = self.SR(i, tq)
            for q in range(4):
                e(f"v_pk_add_f32 {v(B+2*q,2)}, {v(B+2*q,2)}, {v(M[tq],2)} op_sel_hi:[1,0] neg_lo:[0,1] neg_hi:[0,1]")
            pm = pv(prev) if prev else []
            for k in range(8):
                e(f"v_exp_f32 {v(B+k)}, {v(B+k)}")
                if k in (1, 3) and pm: emit_pv(pm.pop(0))
                if k in (5, 7) and ntick > 0 and (k == 5 or n % 2 == 0):
                    e.tick(); ntick -= 1
            for q in range(4):
                e(f"v_cvt_pk_bf16_f32 {v(B+q)}, {v(B+2*q)}, {v(B+2*q+1)}")
            prev = u
        for it in pv(prev): emit_pv(it)

    def att_epilogue(self):
        e = self.e
        e(f"s_lshr_b32 s82, {s(sW)}, 1\ns_lshl_b32 s82, s82, 1\ns_lshl_b32 s83, {s(sCl)}, 2\ns_add_u32 s82, s82, s83\ns_lshl_b32 s82, s82, 4\ns_add_u32 s82, s82, s58\ns_lshl_b32 s82, s82, 10\ns_add_u32 s64, s82, {WS_O}\ns_add_u32 s65, s64, 16384")
        e(f"s_lshl_b32 s82, {s(sCl)}, 7\ns_add_u32 s62, s82, {WS_F2}\ns_lshl_b32 s83, {s(sJ)}, 2\ns_add_u32 s66, s62, s83")
        L = [8, 10]
        for tq in range(2): e(f"v_mov_b32 {v(L[tq])}, {v(self.OR_(1,tq))}\nv_mov_b32 {v(L[tq]+1)}, {v(self.OR_(1,tq))}")
        for tq in range(2): e(f"v_permlane32_swap_b32 {v(L[tq])}, {v(L[tq]+1)}")
        for tq in range(2): e(f"v_mov_b32 {v(L[tq])}, {v(L[tq]+1)}")
        for tq in range(2): e(f"v_permlane16_swap_b32 {v(L[tq])}, {v(L[tq]+1)}")
        for tq in range(2): e(f"v_rcp_f32 {v(L[tq])}, {v(L[tq]+1)}")
        for tq in range(2):
            P = 180 + 4*tq
            for td in range(2):
                O = self.OR_(td, tq)
                for q in range(2): e(f"v_pk_mul_f32 {v(O+2*q,2)}, {v(O+2*q,2)}, {v(L[tq],2)} op_sel_hi:[1,0]")
                e(f"v_cvt_pk_bf16_f32 {v(P+2*td)}, {v(O)}, {v(O+1)}\nv_cvt_pk_bf16_f32 {v(P+2*td+1)}, {v(O+2)}, {v(O+3)}")
            e(f"buffer_store_dwordx4 {v(P,4)}, {v(vL16)}, {srd(SWS)}, {s(64+tq)} offen sc1")
        self.publish("s66", pre=int(self.o.get("o_pre", 12)), post=int(self.o.get("o_post", 0)), name="o")

    def wo_bg(self):
        e = self.e
        e(f"s_lshl_b32 s75, {s(sJ)}, 16\ns_lshl_b32 s76, {s(sW)}, 14\ns_add_u32 s75, s75, s76\ns_add_u32 s75, s75, {WS_WO}")
        for n in range(16):
            e.bg_add("wo", f"s_add_u32 s81, s75, {n*1024}\ns_add_u32 m0, s76, {L_WO + n*1024}\nbuffer_load_dwordx4 {v(vL16)}, {srd(SWS)}, s81 offen sc1 lds")

    WZ2, WZ1 = 128, 0
    def win_bg(self, part, sb):
        e = self.e
        base = self.WZ2 if part else self.WZ1
        for tl in range(2):
            e(f"s_lshl_b32 s82, {s(sJ)}, 1\ns_add_u32 s82, s82, {part}\ns_lshl_b32 s82, s82, 3\ns_lshl_b32 s83, {s(sW)}, 1\ns_add_u32 s83, s83, {tl}\ns_add_u32 s82, s82, s83")
            e(f"s_mul_i32 s82, s82, {14*1024}\ns_add_u32 s82, s82, {WS_WIN}\ns_cmp_lt_u32 s83, 7\ns_cselect_b32 {s(sb+tl)}, s82, {OOB}")
        for st in range(14):
            for tl in range(2):
                e.bg_add(("win", part), f"s_add_u32 s81, {s(sb+tl)}, {(st >> 2)*4096}\nbuffer_load_dwordx4 {a(base + (tl*14+st)*4, 4)}, {v(vL16)}, {srd(SWS)}, s81 offen offset:{(st & 3)*1024} sc1")

    X1 = 248
    def row_offset(self, dst):
        e = self.e
        e(f"v_lshrrev_b32 v6, 2, {v(vRho)}\nv_lshlrev_b32 v6, 3, v6\nv_and_b32 v7, 3, {v(vRho)}\nv_add_u32 v6, v6, v7")
        e(f"s_lshr_b32 s82, {s(sW)}, 1\ns_lshl_b32 s82, s82, 5\ns_and_b32 s83, {s(sW)}, 1\ns_lshl_b32 s83, s83, 2\ns_add_u32 s82, s82, s83\ns_lshl_b32 s83, {s(sCl)}, 6\ns_add_u32 s82, s82, s83")
        e(f"v_add_u32 v6, s82, v6\nv_mul_u32_u24 v6, 896, v6\nv_lshlrev_b32 v7, 4, {v(vG)}\nv_add_u32 {v(dst)}, v6, v7\ns_mul_i32 s67, {s(sJ)}, 112")

    def xslice_bg(self):
        e = self.e
        self.row_offset(247)
        e.bg_add("xs", f"buffer_load_dwordx4 v[188:191], v247, {srd(SX)}, s67 offen")
        e.bg_add("xs", f"buffer_load_dwordx4 v[192:195], v247, {srd(SX)}, s67 offen offset:64")

    def p3(self, held):
        e = self.e
        OF, ACC, RING = 16, 80, 96
        e(f"s_lshl_b32 s84, {s(sCl)}, 2\ns_add_u32 s84, s84, {s(sW)}\ns_lshl_b32 s84, s84, 14\ns_add_u32 s84, s84, {WS_O}")
        for k in range(1, 4): e(f"s_add_u32 {s(84+k)}, s84, {4096*k}")
        self.spoll("s62", "f2", fast=True)
        self.stamp("f2poll")
        to = []
        for h in range(16):
            to.append(e.vm(f"buffer_load_dwordx4 {v(OF+4*h,4)}, {v(vL16)}, {srd(SWS)}, {s(84 + (h >> 2))} offen offset:{(h & 3)*1024} sc1"))
        e(f"v_add_u32 v7, {L_WO}, {v(vL16)}")
        GA, M2 = 144, 152
        e(f"v_lshlrev_b32 v8, 4, {v(vG)}\ns_mul_i32 s82, {s(sJ)}, 112\ns_add_u32 s82, s82, {L_M}\nv_add_u32 v8, s82, v8")
        e(f"ds_read_b128 {v(GA,4)}, v8\nds_read_b128 {v(GA+4,4)}, v8 offset:64\nds_read_b128 {v(M2,4)}, v8 offset:1792\nds_read_b128 {v(M2+4,4)}, v8 offset:{1792+64}")
        e(f"v_cmp_gt_u32 vcc, 3, {v(vG)}\nv_cndmask_b32 v9, 0, -1, vcc")
        early = self.o.get("p3early")
        XU, GU, MU = (160, 196, 212) if early else (16, 32, 48)
        def unpack_xg():
            for k in range(4): e(f"v_and_b32 {v(192+k)}, v9, {v(192+k)}")
            for k in range(8):
                e(f"v_lshlrev_b32 {v(XU+2*k)}, 16, {v(188+k)}\nv_and_b32 {v(XU+2*k+1)}, {s(sHI)}, {v(188+k)}")
                e(f"v_lshlrev_b32 {v(GU+2*k)}, 16, {v(GA+k)}\nv_and_b32 {v(GU+2*k+1)}, {s(sHI)}, {v(GA+k)}")
        def unpack_m():
            for k in range(8): e(f"v_lshlrev_b32 {v(MU+2*k)}, 16, {v(M2+k)}\nv_and_b32 {v(MU+2*k+1)}, {s(sHI)}, {v(M2+k)}")
        if early:
            e.wait_lg(e.tlg())
            unpack_xg(); unpack_m()
        self.gemm_loop(16, lambda h: [f"ds_read_b128 {v(RING + ((h % 3)*4 + ft)*4, 4)}, v7 offset:{(h*4+ft)*1024}" for ft in range(4)],
                       lambda h: [f"{MF} {v(ACC+4*ft,4)}, {v(RING + ((h % 3)*4 + ft)*4, 4)}, {v(OF+4*h,4)}, {v(ACC+4*ft,4) if h else 0}" for ft in range(4)],
                       depth=2, pre=lambda h: e.wait_vm(to[h]))
        self.stamp("p3gemm")
        if not early: unpack_xg()
        for k in range(8):
            e(f"v_pk_fma_f32 {v(XU+2*k,2)}, {v(GU+2*k,2)}, {v(ACC+2*k,2)}, {v(XU+2*k,2)}")
        for k in range(8): e(f"v_cvt_pk_bf16_f32 {v(self.X1+k)}, {v(XU+2*k)}, {v(XU+2*k+1)}")
        for k in range(8):
            e(f"v_lshlrev_b32 {v(XU+2*k)}, 16, {v(self.X1+k)}\nv_and_b32 {v(XU+2*k+1)}, {s(sHI)}, {v(self.X1+k)}")
        if not early: unpack_m()
        YP = 64
        for k in range(8):
            e(f"v_pk_mul_f32 {v(MU+2*k,2)}, {v(MU+2*k,2)}, {v(XU+2*k,2)}")
        for k in range(8): e(f"v_cvt_pk_bf16_f32 {v(YP+k)}, {v(MU+2*k)}, {v(MU+2*k+1)}")
        e(f"s_lshl_b32 s82, {s(sCl)}, 2\ns_add_u32 s82, s82, {s(sW)}\ns_mul_i32 s82, s82, 14336\ns_mul_i32 s83, {s(sJ)}, 1792\ns_add_u32 s82, s82, s83\ns_add_u32 s82, s82, {WS_Y}")
        e(f"buffer_store_dwordx4 {v(YP,4)}, {v(vL16)}, {srd(SWS)}, s82 offen sc1")
        e("s_mov_b32 exec_hi, 0x0000ffff")
        e(f"buffer_store_dwordx4 {v(YP+4,4)}, {v(vL16)}, {srd(SWS)}, s82 offen offset:1024 sc1")
        e("s_mov_b32 exec_hi, -1")
        SS, QQ = 72, 74
        e(f"v_pk_add_f32 {v(SS,2)}, {v(XU,2)}, {v(XU+2,2)}\nv_pk_mul_f32 {v(QQ,2)}, {v(XU,2)}, {v(XU,2)}")
        for k in range(2, 8): e(f"v_pk_add_f32 {v(SS,2)}, {v(SS,2)}, {v(XU+2*k,2)}")
        for k in range(1, 8): e(f"v_pk_fma_f32 {v(QQ,2)}, {v(XU+2*k,2)}, {v(XU+2*k,2)}, {v(QQ,2)}")
        e(f"v_add_f32 {v(SS)}, {v(SS)}, {v(SS+1)}\nv_add_f32 {v(SS+1)}, {v(QQ)}, {v(QQ+1)}")
        self.allreduce_g2(SS, SS+1, 5, 6, "add")
        e(f"s_lshl_b32 s82, {s(sCl)}, 3\ns_add_u32 s82, s82, {s(sJ)}\ns_lshl_b32 s82, s82, 9\ns_lshl_b32 s83, {s(sW)}, 7\ns_add_u32 s82, s82, s83\ns_add_u32 s82, s82, {WS_ST1}")
        e(f"v_lshlrev_b32 v7, 3, {v(vRho)}")
        e("s_mov_b32 exec_lo, 0xffff\ns_mov_b32 exec_hi, 0")
        e(f"buffer_store_dwordx2 {v(SS,2)}, v7, {srd(SWS)}, s82 offen sc1")
        e("s_mov_b64 exec, -1")
        e(f"s_lshl_b32 s82, {s(sCl)}, 7\ns_add_u32 s62, s82, {WS_F3}\ns_lshl_b32 s83, {s(sJ)}, 2\ns_add_u32 s66, s62, s83")
        e.bgq = held
        self.publish("s66", pre=int(self.o.get("y_pre", 16)), post=int(self.o.get("y_post", 0)), name="y")

    A2, A1, YR = 16, 48, 80
    UVD, UU, VV, MSR = 128, 144, 160, 176
    ST1R, ST2R, Z1P = 188, 196, 232
    def reduce4(self, r0, r1, r2, r3):
        e = self.e
        e(f"v_permlane32_swap_b32 {v(r0)}, {v(r2)}\nv_permlane32_swap_b32 {v(r1)}, {v(r3)}")
        e(f"v_add_f32 {v(r0)}, {v(r0)}, {v(r2)}\nv_add_f32 {v(r1)}, {v(r1)}, {v(r3)}")
        e(f"v_permlane16_swap_b32 {v(r0)}, {v(r1)}\nv_add_f32 {v(r0)}, {v(r0)}, {v(r1)}")

    def stats_finish(self, S_, Q_, n, out, kind):
        e = self.e
        e(f"v_mul_f32 {v(S_)}, {lit(1/n)}, {v(S_)}\nv_mul_f32 {v(Q_)}, {lit(1/n)}, {v(Q_)}")
        e(f"v_fma_f32 {v(Q_)}, -{v(S_)}, {v(S_)}, {v(Q_)}\nv_max_f32 {v(Q_)}, 0, {v(Q_)}\nv_add_f32 {v(Q_)}, {lit(1e-5)}, {v(Q_)}")
        e(f"v_rsq_f32 {v(out)}, {v(Q_)}")
        if kind == "mean": e(f"v_mov_b32 {v(out+1)}, {v(S_)}")
        else: e(f"v_mul_f32_e64 {v(out+1)}, -{v(S_)}, {v(out)}")

    def uv_mfmas(self, part):
        e = self.e
        base, k0 = (self.WZ2, 0) if part else (self.WZ1, 2)
        e(f"v_and_b32 v8, 1, {v(vRho)}\nv_mul_u32_u24 v8, 896, v8\nv_lshlrev_b32 v9, 4, {v(vG)}\nv_sub_u32 v8, v9, v8\nv_add_u32 v8, {L_M + 1792}, v8")
        e.wait_bg(("win", part))
        self.gemm_loop(14, lambda st: [f"ds_read_b128 {v(self.MSR + (st % 3)*4, 4)}, v8 offset:{st*64}"],
                       lambda st: [f"{MF} {v(self.UVD + 4*(k0+tl), 4)}, {a(base + (tl*14+st)*4, 4)}, {v(self.MSR + (st % 3)*4, 4)}, {v(self.UVD + 4*(k0+tl), 4) if st else 0}" for tl in range(2)],
                       depth=2)

    def uv_extract(self, part):
        e = self.e
        k0 = 0 if part else 2
        for k in range(k0, k0+2):
            for r in range(4):
                e(f"v_mov_b32_dpp {v(self.UU+4*k+r)}, {v(self.UVD+4*k+r)} quad_perm:[0,0,2,2] row_mask:0xf bank_mask:0xf")
                e(f"v_mov_b32_dpp {v(self.VV+4*k+r)}, {v(self.UVD+4*k+r)} quad_perm:[1,1,3,3] row_mask:0xf bank_mask:0xf")

    def p4_head(self):
        e = self.e
        e(f"s_lshl_b32 s84, {s(sCl)}, 2\ns_add_u32 s84, s84, {s(sW)}\ns_mul_i32 s84, s84, 14336\ns_add_u32 s84, s84, {WS_Y}")
        for k in range(1, 4): e(f"s_add_u32 {s(84+k)}, s84, {4096*k}")
        e(f"s_mul_i32 s88, {s(sW)}, 14336\ns_add_u32 s88, s88, {L_Y}")
        e(f"v_lshlrev_b32 v7, 10, {v(vG)}\nv_lshlrev_b32 v8, 3, {v(vRho)}\nv_add_u32 v7, v7, v8")
        e(f"s_lshl_b32 s89, {s(sCl)}, 12\ns_lshl_b32 s90, {s(sW)}, 7\ns_add_u32 s89, s89, s90\ns_add_u32 s89, s89, {WS_ST1}")
        self.spoll("s62", "f3", fast=True)
        self.stamp("f3poll")
        e(f"buffer_load_dwordx2 v[204:205], v7, {srd(SWS)}, s89 offen sc1")
        t_s = e.vm(f"buffer_load_dwordx2 v[206:207], v7, {srd(SWS)}, s89 offen offset:512 sc1")
        for n in range(14):
            if n % 4 == 0: e(f"s_add_u32 m0, s88, {n*1024}")
            e(f"buffer_load_dwordx4 {v(vL16)}, {srd(SWS)}, {s(84 + (n >> 2))} offen offset:{(n & 3)*1024} sc1 lds")
        t_y = e.tvm()
        self.uv_mfmas(1)
        self.wsp_bg(0, 0); self.wsp_bg(1, 1)
        e.bg_flush()
        e.wait_vm(t_s)
        e("v_add_f32 v204, v204, v206\nv_add_f32 v205, v205, v207")
        self.allreduce_g2(204, 205, 5, 6, "add")
        self.stats_finish(204, 205, 448, 206, "mean")
        e(f"s_lshl_b32 s82, {s(sW)}, 7\ns_add_u32 s82, s82, {L_ST}\nv_lshlrev_b32 v7, 3, {v(vRho)}\nv_add_u32 v7, s82, v7")
        e("ds_write_b64 v7, v[206:207]")
        self.uv_extract(1)
        e.wait_vm(t_y)
        e.barrier()
        e(f"v_lshlrev_b32 v7, 3, {v(vRho)}\nv_add_u32 v7, {L_ST}, v7")
        for tt in range(4): e(f"ds_read_b64 {v(self.ST1R+2*tt,2)}, v7 offset:{tt*128}")

    def p4_gemm(self, part, tick_every, first=0, last=14):
        e = self.e
        base = self.WZ2 if part else self.WZ1
        A = self.A2 if part else self.A1
        e(f"v_add_u32 v7, {L_Y}, {v(vL16)}")
        self.gemm_loop(last, lambda st: [f"ds_read_b128 {v(self.YR + ((st % 3)*4 + tt)*4, 4)}, v7 offset:{tt*14336 + st*1024}" for tt in range(4)],
                       lambda st: [f"{MF} {v(A + (tl*4+tt)*4, 4)}, {a(base + (tl*14+st)*4, 4)}, {v(self.YR + ((st % 3)*4 + tt)*4, 4)}, {v(A + (tl*4+tt)*4, 4) if st else 0}"
                                   for tl in range(2) for tt in range(4)],
                       depth=2, tick_every=tick_every, first=first)

    def gelu_consts(self):
        e = self.e
        c = 2.0 * 0.7978845608028654 * 1.4426950408889634
        e(f"s_mov_b32 s68, {lit(-c*0.044715)}\ns_mov_b32 s69, {lit(-c)}\ns_mov_b32 s70, 1.0\ns_mov_b32 s71, 1.0")

    def p4_act(self, part, tick=True):
        e = self.e
        A = self.A2 if part else self.A1
        k0 = 0 if part else 2
        T = 208
        items = [(tl, tt) for tl in range(2) for tt in range(4)]
        for tl, tt in items:
            st = v(self.ST1R + 2*tt, 2)
            X = [v(A + (tl*4+tt)*4 + 2*q, 2) for q in range(2)]
            U = [v(self.UU + 4*(k0+tl) + 2*q, 2) for q in range(2)]
            V_ = [v(self.VV + 4*(k0+tl) + 2*q, 2) for q in range(2)]
            t = [T + 4*((tl*4+tt) & 1) + 2*q for q in range(2)]
            for q in range(2): e(f"v_pk_fma_f32 {X[q]}, {U[q]}, {st}, {X[q]} op_sel:[0,1,0] op_sel_hi:[1,1,1] neg_lo:[0,1,0] neg_hi:[0,1,0]")
            for q in range(2): e(f"v_pk_fma_f32 {X[q]}, {X[q]}, {st}, {V_[q]} op_sel:[0,0,0] op_sel_hi:[1,0,1]")
            for q in range(2): e(f"v_pk_mul_f32 {v(t[q],2)}, {X[q]}, {X[q]}")
            for q in range(2): e(f"v_pk_fma_f32 {v(t[q],2)}, {v(t[q],2)}, s[68:69], s[68:69] op_sel:[0,0,1] op_sel_hi:[1,0,1]")
            for q in range(2): e(f"v_pk_mul_f32 {v(t[q],2)}, {v(t[q],2)}, {X[q]}")
            for q in range(2): e(f"v_exp_f32 {v(t[q])}, {v(t[q])}\nv_exp_f32 {v(t[q]+1)}, {v(t[q]+1)}")
            if tick: e.tick(getattr(self, "act_ticks", 2) - 1)
            for q in range(2): e(f"v_pk_add_f32 {v(t[q],2)}, {v(t[q],2)}, s[70:71]")
            for q in range(2): e(f"v_rcp_f32 {v(t[q])}, {v(t[q])}\nv_rcp_f32 {v(t[q]+1)}, {v(t[q]+1)}")
            if tick: e.tick()
            for q in range(2): e(f"v_pk_mul_f32 {X[q]}, {X[q]}, {v(t[q],2)}")

    def p4_z2_stats(self):
        e = self.e
        A = self.A2
        SS, QQ = 208, 216
        for tt in range(4):
            S_, Q_ = v(SS+2*tt, 2), v(QQ+2*tt, 2)
            xs = [A + (tl*4+tt)*4 + 2*q for tl in range(2) for q in range(2)]
            e(f"v_pk_add_f32 {S_}, {v(xs[0],2)}, {v(xs[1],2)}\nv_pk_mul_f32 {Q_}, {v(xs[0],2)}, {v(xs[0],2)}")
            for x0, x1 in zip(xs[2:] + [None], xs[1:]):
                if x0 is not None: e(f"v_pk_add_f32 {S_}, {S_}, {v(x0,2)}")
                e(f"v_pk_fma_f32 {Q_}, {v(x1,2)}, {v(x1,2)}, {Q_}")
        for tt in range(4):
            e(f"v_add_f32 {v(SS+2*tt)}, {v(SS+2*tt)}, {v(SS+2*tt+1)}\nv_add_f32 {v(QQ+2*tt)}, {v(QQ+2*tt)}, {v(QQ+2*tt+1)}")
        self.reduce4(SS, SS+2, SS+4, SS+6)
        self.reduce4(QQ, QQ+2, QQ+4, QQ+6)
        e(f"v_mov_b32 {v(SS+1)}, {v(QQ)}")
        e(f"s_lshl_b32 s82, {s(sW)}, 9\ns_add_u32 s82, s82, {L_ST + 1024}\nv_lshlrev_b32 v7, 3, {v(vLane)}\nv_add_u32 v7, s82, v7")
        e(f"ds_write_b64 v7, {v(SS,2)}")
        e(f"v_lshlrev_b32 v7, 9, {v(vG)}\nv_lshlrev_b32 v8, 3, {v(vRho)}\nv_add_u32 v7, v7, v8\ns_lshl_b32 s82, {s(sW)}, 7\ns_add_u32 s82, s82, {L_ST + 1024}\nv_add_u32 v7, s82, v7")
        e(f"s_lshl_b32 s82, {s(sCl)}, 3\ns_add_u32 s82, s82, {s(sJ)}\ns_lshl_b32 s82, s82, 10\ns_lshl_b32 s83, {s(sW)}, 8\ns_add_u32 s82, s82, s83\ns_add_u32 s84, s82, {WS_ST2}")
        e(f"v_lshlrev_b32 v8, 4, {v(vRho)}")
        e.barrier()
        t = e.ds(f"ds_read_b64 {v(SS,2)}, v7")
        e.wait_lg(t)
        self.allreduce_g2(SS, SS+1, 5, 6, "add")
        e(f"v_mov_b32 {v(SS+2)}, {v(SS+1)}\nv_mov_b32 {v(SS+1)}, {s(sN)}\nv_mov_b32 {v(SS+3)}, {s(sN)}")
        e("s_mov_b32 exec_lo, 0xffff\ns_mov_b32 exec_hi, 0")
        e(f"buffer_store_dwordx4 {v(SS,4)}, v8, {srd(SWS)}, s84 offen sc1")
        e("s_mov_b64 exec, -1")

    def p4_z1_pack(self):
        e = self.e
        for tl in range(2):
            for tt in range(4):
                X = self.A1 + (tl*4+tt)*4
                P = self.Z1P + (tl*4+tt)*2
                e(f"v_cvt_pk_bf16_f32 {v(P)}, {v(X)}, {v(X+1)}\nv_cvt_pk_bf16_f32 {v(P+1)}, {v(X+2)}, {v(X+3)}")
        e(f"s_lshl_b32 s82, {s(sW)}, 12\ns_add_u32 s82, s82, {L_TR}\nv_add_u32 v7, s82, {v(vL16)}")
        for k in range(4): e(f"ds_write_b128 v7, {v(self.Z1P+4*k,4)} offset:{k*1024}")
        e.wait_lg(e.tlg())

    def p4_z2_publish(self):
        e = self.e
        e(f"v_lshlrev_b32 v7, 11, {v(vG)}\nv_lshlrev_b32 v8, 4, {v(vRho)}\nv_add_u32 v204, v7, v8")
        e(f"s_lshl_b32 s82, {s(sCl)}, 13\ns_lshl_b32 s83, {s(sW)}, 8\ns_add_u32 s82, s82, s83\ns_add_u32 s64, s82, {WS_ST2}")
        e(f"s_lshl_b32 s82, {s(sW)}, 12\ns_add_u32 s82, s82, {L_TR}")
        e(f"v_lshrrev_b32 v8, 2, {v(vRho)}\nv_xor_b32 v8, v8, {v(vG)}\nv_lshlrev_b32 v8, 3, v8\nv_lshlrev_b32 v9, 5, {v(vRho)}\nv_add_u32 v8, v8, v9\nv_add_u32 v8, s82, v8")
        e(f"v_lshrrev_b32 v9, 2, {v(vRho)}\nv_lshlrev_b32 v10, 2, {v(vG)}\nv_add_u32 v9, v9, v10\nv_lshlrev_b32 v9, 5, v9\nv_and_b32 v10, 3, {v(vRho)}\nv_xor_b32 v10, v10, {v(vG)}\nv_lshlrev_b32 v10, 3, v10\nv_add_u32 v9, v9, v10\nv_add_u32 v9, s82, v9")
        e(f"v_lshlrev_b32 v7, 3, {v(vRho)}\nv_add_u32 v7, {L_ST + 512}, v7\ns_lshl_b32 s82, {s(sW)}, 7\nv_add_u32 v10, s82, v7")
        for tl in range(2):
            e(f"s_lshl_b32 s82, {s(sJ)}, 6\ns_lshl_b32 s83, {s(sCl)}, 1\ns_add_u32 s82, s82, s83\ns_mul_i32 s82, s82, 7\ns_lshl_b32 s83, {s(sW)}, 1\ns_add_u32 s83, s83, {tl}\ns_add_u32 s82, s82, s83")
            e(f"s_lshl_b32 s82, s82, 10\ns_add_u32 s82, s82, {WS_Z}\ns_cmp_lt_u32 s83, 7\ns_cselect_b32 {s(84+2*tl)}, s82, {OOB}\ns_add_u32 {s(85+2*tl)}, {s(84+2*tl)}, 7168")
        e(f"s_lshl_b32 s82, {s(sJ)}, 7\ns_lshl_b32 s83, {s(sCl)}, 2\ns_add_u32 s66, s82, s83\ns_add_u32 s66, s66, {WS_F5}")
        e(f"s_lshl_b32 s83, {s(sW)}, 5\ns_add_u32 s62, s82, s83\ns_add_u32 s62, s62, {WS_F5}")
        self.poll([(208, 4, 204, "s64", 0), (212, 4, 204, "s64", 1024)], [(209, None), (211, None), (213, None), (215, None)], stem="st2")
        self.stamp("st2poll")
        e("v_add_f32 v208, v208, v212\nv_add_f32 v209, v210, v214")
        self.allreduce_g2(208, 209, 5, 6, "add")
        self.stats_finish(208, 209, 896, 210, "nmr")
        e("ds_write_b64 v10, v[210:211]")
        e.barrier()
        tks = [e.ds(f"ds_read_b64 {v(self.ST2R+2*tt,2)}, v7 offset:{tt*128}") for tt in range(4)]
        P = 208
        for tt in range(4):
            e.wait_lg(tks[tt])
            for tl in range(2):
                X = self.A2 + (tl*4+tt)*4
                st = v(self.ST2R + 2*tt, 2)
                for q in range(2):
                    e(f"v_pk_fma_f32 {v(X+2*q,2)}, {v(X+2*q,2)}, {st}, {st} op_sel:[0,0,1] op_sel_hi:[1,0,1]")
                p = P + 2*((tt*2+tl) % 4)
                e(f"v_cvt_pk_bf16_f32 {v(p)}, {v(X)}, {v(X+1)}\nv_cvt_pk_bf16_f32 {v(p+1)}, {v(X+2)}, {v(X+3)}")
                e(f"ds_write_b64 v8, {v(p,2)} offset:{(tl*4+tt)*512}")
        FR = 216
        e.wait_lg(e.tlg())
        tk = {}
        for tl in range(2):
            for b in range(2):
                for tau in range(2):
                    tk[tl, b] = e.ds(f"ds_read_b64_tr_b16 {v(FR + (tl*2+b)*4 + 2*tau, 2)}, v9 offset:{(tl*4 + 2*b + tau)*512}")
        for tl in range(2):
            e.wait_lg(tk[tl, 0])
            e(f"buffer_store_dwordx4 {v(FR + (tl*2)*4, 4)}, {v(vL16)}, {srd(SWS)}, {s(84+2*tl)} offen sc1")
            e.wait_lg(tk[tl, 1])
            e(f"buffer_store_dwordx4 {v(FR + (tl*2+1)*4, 4)}, {v(vL16)}, {srd(SWS)}, {s(85+2*tl)} offen sc1")
        self.publish("s66", pre=int(self.o.get("z_pre", 0)), name="z", fast=False)

    A5, ZR, BSP, ZD = 16, 128, 240, 4
    Z1R = 144
    def wa(self, st): return (128 + 16*st) % 256
    def wsp_setup(self):
        e = self.e
        e(f"v_lshrrev_b32 v7, 5, {v(vLane)}\nv_lshlrev_b32 v7, 3, v7\nv_bfe_u32 v8, {v(vLane)}, 3, 2\nv_add_u32 v7, v7, v8\nv_lshlrev_b32 v7, 12, v7")
        e(f"v_and_b32 v12, 7, {v(vLane)}\nv_xor_b32 v12, v12, {v(vG)}\nv_xor_b32 v13, 4, v12\nv_lshlrev_b32 v12, 4, v12\nv_lshlrev_b32 v13, 4, v13")
        e("v_add_u32 v12, v7, v12\nv_add_u32 v13, v7, v13")
        e(f"s_lshl_b32 s72, {s(sCl)}, 18\ns_lshl_b32 s82, {s(sW)}, 10\ns_add_u32 s72, s72, s82")
        e(f"s_lshl_b32 s73, {s(sW)}, 13\ns_add_u32 s73, s73, {L_WSP}")
        e(f"v_lshrrev_b32 v14, 1, {v(vRho)}\nv_xor_b32 v14, v14, {v(vG)}\nv_xor_b32 v15, 4, v14\nv_lshlrev_b32 v14, 4, v14\nv_lshlrev_b32 v15, 4, v15")
        e(f"v_lshlrev_b32 v7, 7, {v(vRho)}\nv_add_u32 v14, v14, v7\nv_add_u32 v15, v15, v7\nv_add_u32 v14, s73, v14\nv_add_u32 v15, s73, v15")

    def wsp_bg(self, b, slot):
        e = self.e
        for rg in range(8):
            row = 32*(rg >> 2) + 16*(rg & 1) + 4*((rg >> 1) & 1)
            e.bg_add(("wsp", b), f"s_add_u32 m0, s73, {slot*32768 + rg*1024}\ns_add_u32 s81, s72, {row*4096 + 128*b}\nbuffer_load_dwordx4 {v(12 + (rg & 1))}, {srd(SWSP)}, s81 offen lds")

    def wsp_park(self, b, slot):
        e = self.e
        e.wait_bg(("wsp", b))
        t = None
        for sp in range(2):
            if slot >= 2: e(f"v_add_u32 v7, 65536, {v(14+sp)}")
            for tt in range(4):
                t = e.ds(f"ds_read_b128 {a(self.wa(2*b+sp) + 4*tt, 4)}, {v(7 if slot >= 2 else 14+sp)} offset:{(slot & 1)*32768 + tt*2048}")
        return t

    def bsp_loads(self):
        e = self.e
        e(f"v_lshrrev_b32 v6, 2, {v(vRho)}\nv_lshlrev_b32 v6, 3, v6\nv_and_b32 v7, 3, {v(vRho)}\nv_add_u32 v6, v6, v7\nv_lshlrev_b32 v6, 1, v6")
        e(f"s_lshl_b32 s82, {s(sCl)}, 7")
        for tt in range(4):
            e(f"buffer_load_ushort {v(self.BSP+tt)}, v6, {srd(SBSP)}, s82 offen offset:{2*(32*(tt>>1) + 4*(tt&1))}")

    def p5_main(self):
        e = self.e
        ZD = int(self.o.get('zd', self.ZD))
        e(f"s_lshl_b32 s82, {s(sJ)}, 6\ns_lshl_b32 s83, {s(sW)}, 4\ns_add_u32 s82, s82, s83\ns_mul_i32 s74, s82, 7168\ns_add_u32 s74, s74, {WS_Z}")
        self.spoll("s62", "f5")
        self.stamp("f5poll")
        e("v_add_u32 v10, 65536, v14\nv_add_u32 v11, 65536, v15")
        tz = {}
        def zgroups(st):
            out = []
            for t in range(7):
                pre = f"s_add_u32 s82, s74, {st*7168}\n" if t == 0 else (f"s_add_u32 s82, s74, {st*7168 + 4096}\n" if t == 4 else "")
                out.append(pre + f"buffer_load_dwordx4 {v(self.ZR + ((st % ZD)*7 + t)*4, 4)}, {v(vL16)}, {srd(SWS)}, s82 offen offset:{(t & 3)*1024} sc1")
            return out
        for st in range(ZD - 1):
            for g in zgroups(st): e(g)
            tz[st] = e.tvm()
        def mf(st, t, tt):
            D = v(self.A5 + (t*4+tt)*4, 4)
            return f"{MF} {D}, {v(self.ZR + ((st % ZD)*7 + t)*4, 4)}, {a(self.wa(st) + 4*tt, 4)}, {D if st else 0}"
        parks = []
        NT = int(self.o.get('nt5', 13))
        for st in range(NT):
            zs = zgroups(st + ZD - 1) if st + ZD - 1 < 16 else []
            e.wait_vm(tz[st])
            if st in (0, 2, 4, 6, 8, 10, 12): self.stamp(f"p5s{st}")
            if self.o.get("latepark"):
                if st in (5, 7, 9, 11):
                    b = 4 + (st - 5) // 2
                    parks = self.wsp_park_list(b, (2, 3, 0, 1)[b - 4])
                if st in (8, 10, 12): e.wait_lg(e.tlg())
            else:
                if st == 2: parks = self.wsp_park_list(4, 2) + self.wsp_park_list(5, 3)
                if st == 5: parks = self.wsp_park_list(6, 0) + self.wsp_park_list(7, 1)
                if st == 8: e.wait_lg(e.tlg())
                if st == 10 and not self.o.get("ownred"): e.barrier()
            k = 0
            for t in range(7):
                for tt in range(4):
                    e(mf(st, t, tt))
                    k += 1
                    if k % 4 == 1 and zs: e(zs.pop(0))
                    elif k % 2 == 0 and parks: e.ds(parks.pop(0))
                    elif k % 7 == 3 and e.bg_left(): e.tick()
            if st + ZD - 1 < 16: tz[st + ZD - 1] = e.tvm()
        assert not parks
        if self.o.get("latepark"): e.barrier()
        e.wait_vm(tz[15])
        self.stamp("p5s13")
        own = self.o.get("ownred")
        if own:
            e(f"s_lshl_b32 s82, {s(sW)}, 13\nv_add_u32 v7, s82, {v(vL16)}\nv_add_u32 v6, 65536, v7")
        else:
            e(f"s_mul_i32 s82, {s(sW)}, 28672\ns_add_u32 s82, s82, {L_RED}\nv_add_u32 v7, s82, {v(vL16)}")
        def wr(k):
            if own: return f"ds_write_b128 {v(6 if k >= 16 else 7)}, {v(self.A5 + 4*k, 4)} offset:{((k >> 3) & 1)*32768 + (k & 7)*1024}"
            return f"ds_write_b128 v7, {v(self.A5 + 4*k, 4)} offset:{k*1024}"
        pend = []
        self.wout_bg()
        nw = 20 if NT == 13 else 21
        if NT == 14: nw = 21
        for t in range(7):
            k = 0
            for st in range(NT, 16):
                for tt in range(4):
                    e(mf(st, t, tt))
                    if NT == 13: wslot, tslot = (k >= 5 and k % 2 == 1), k in (0, 2, 4)
                    else: wslot, tslot = k >= 4, k in (0, 1, 2)
                    if wslot and pend: e.ds(pend.pop(0))
                    elif tslot and nw > 0:
                        e.tick(); nw -= 1
                    k += 1
            pend = [wr(t*4+tt) for tt in range(4)]
        for w_ in pend: e.ds(w_)

    def wsp_park_list(self, b, slot):
        e = self.e
        e.wait_bg(("wsp", b))
        out = []
        for sp in range(2):
            for tt in range(4):
                out.append(f"ds_read_b128 {a(self.wa(2*b+sp) + 4*tt, 4)}, {v((10 if slot >= 2 else 14) + sp)} offset:{(slot & 1)*32768 + tt*2048}")
        return out

    def wout_bg(self):
        e = self.e
        e(f"s_mul_i32 s75, {s(sJ)}, 114688\ns_mul_i32 s83, {s(sW)}, 28672\ns_add_u32 s75, s75, s83\ns_add_u32 s75, s75, {WS_WOUT}")
        for k in range(7):
            for ft in range(4):
                e.bg_add("wout", f"s_add_u32 s81, s75, {k*4096}\nbuffer_load_dwordx4 {a((k*4+ft)*4, 4)}, {v(vL16)}, {srd(SWS)}, s81 offen offset:{ft*1024} sc1")

    def p5_epilogue(self):
        e = self.e
        e(f"s_lshl_b32 s82, {s(sW)}, 12\ns_add_u32 s82, s82, {L_TR}\nv_add_u32 v8, s82, {v(vL16)}")
        for k in range(4): e(f"ds_read_b128 {v(self.Z1R+4*k,4)}, v8 offset:{k*1024}")
        if self.o.get("ownred"):
            e(f"s_lshl_b32 s82, {s(sW)}, 15\nv_add_u32 v7, s82, {v(vL16)}")
        else:
            e(f"s_lshl_b32 s82, {s(sW)}, 13\ns_add_u32 s82, s82, {L_RED}\nv_add_u32 v7, s82, {v(vL16)}\nv_add_u32 v8, 57344, v7")
        for tt in range(4): e(f"v_lshlrev_b32 {v(self.BSP+tt)}, 16, {v(self.BSP+tt)}")
        e(f"v_and_b32 v9, 1, {v(vG)}\nv_mul_u32_u24 v9, 28672, v9\nv_lshrrev_b32 v10, 1, {v(vG)}\nv_lshlrev_b32 v10, 8, v10\nv_add_u32 v9, v9, v10\nv_lshlrev_b32 v10, 4, {v(vRho)}\nv_add_u32 v9, v9, v10")
        e.barrier()
        R = 16
        tk = {}
        def rd(idx):
            for src in range(4):
                if self.o.get("ownred"): tk[idx] = e.ds(f"ds_read_b128 {v(R + (idx*4+src)*4, 4)}, v7 offset:{src*8192 + idx*1024}")
                else: tk[idx] = e.ds(f"ds_read_b128 {v(R + (idx*4+src)*4, 4)}, {v(7 + (src >> 1))} offset:{(src & 1)*28672 + idx*1024}")
        order = [tl*4 + tt for tl in range(2) for tt in range(4)]
        for idx in order[:3]: rd(idx)
        Q = 216
        for n, idx in enumerate(order):
            tl, tt = idx >> 2, idx & 3
            if n + 3 < 8: rd(order[n+3])
            e.wait_lg(tk[idx])
            r = R + idx*16
            for q in range(2): e(f"v_pk_add_f32 {v(r+2*q,2)}, {v(r+2*q,2)}, {v(r+4+2*q,2)}\nv_pk_add_f32 {v(r+8+2*q,2)}, {v(r+8+2*q,2)}, {v(r+12+2*q,2)}")
            for q in range(2): e(f"v_pk_add_f32 {v(r+2*q,2)}, {v(r+2*q,2)}, {v(r+8+2*q,2)}")
            for q in range(2):
                z = self.Z1R + idx*2 + q
                e(f"v_lshlrev_b32 {v(r+4+2*q)}, 16, {v(z)}\nv_and_b32 {v(r+5+2*q)}, {s(sHI)}, {v(z)}")
            for k in range(4): e(f"v_add_f32 {v(r+k)}, {v(r+k)}, {v(self.BSP+tt)}")
            for q in range(2): e(f"v_pk_mul_f32 {v(r+2*q,2)}, {v(r+2*q,2)}, {v(r+4+2*q,2)}")
            for q in range(2): e(f"v_cvt_pk_bf16_f32 {v(Q + (tl*2 + (tt >> 1))*4 + 2*(tt & 1) + q)}, {v(r+2*q)}, {v(r+2*q+1)}")
            if tt & 1:
                b = tt >> 1
                if b == 0:
                    e(f"s_lshl_b32 s83, {s(sW)}, 1\ns_add_u32 s83, s83, {tl}\ns_mul_i32 s84, {s(sJ)}, 14\ns_lshl_b32 s85, s83, 1\ns_add_u32 s84, s84, s85\ns_lshl_b32 s84, s84, 8")
                    e(f"s_lshl_b32 s85, {s(sCl)}, 2\ns_mul_i32 s85, s85, 28672\ns_add_u32 s84, s84, s85\ns_add_u32 s84, s84, {WS_G}\ns_cmp_lt_u32 s83, 7\ns_cselect_b32 s84, s84, {OOB}\ns_add_u32 s85, s84, 57344")
                q = Q + (tl*2+b)*4
                e(f"v_permlane16_swap_b32 {v(q)}, {v(q+2)}\nv_permlane16_swap_b32 {v(q+1)}, {v(q+3)}")
                e(f"buffer_store_dwordx4 {v(q,4)}, v9, {srd(SWS)}, {('s84','s85')[b]} offen sc1")
        e(f"s_lshl_b32 s82, {s(sCl)}, 7\ns_add_u32 s62, s82, {WS_F6}\ns_lshl_b32 s83, {s(sJ)}, 2\ns_add_u32 s66, s62, s83")
        self.publish("s66", pre=int(self.o.get("g_pre", 8)), post=int(self.o.get("g_post", 0)), name="g")

    def p6(self):
        e = self.e
        GF, ACC = 16, 128
        e(f"s_lshl_b32 s82, {s(sCl)}, 2\ns_mul_i32 s82, s82, 28672\ns_mul_i32 s83, {s(sW)}, 7168\ns_add_u32 s82, s82, s83\ns_add_u32 s82, s82, {WS_G}")
        for tt in range(4): e(f"s_add_u32 {s(76+tt)}, s82, {tt*28672}")
        GB = 192
        e(f"v_lshlrev_b32 v8, 4, {v(vG)}\ns_mul_i32 s82, {s(sJ)}, 112\ns_add_u32 s82, s82, {L_M + 2688}\nv_add_u32 v8, s82, v8")
        e(f"ds_read_b128 {v(GB,4)}, v8\nds_read_b128 {v(GB+4,4)}, v8 offset:64")
        self.row_offset(9)
        self.spoll("s62", "f6", fast=True)
        self.stamp("f6poll")
        tg = {}
        for k in range(7):
            for tt in range(4):
                if k == 4: e(f"s_add_u32 {s(76+tt)}, {s(76+tt)}, 4096")
                tg[k] = e.vm(f"buffer_load_dwordx4 {v(GF + (k*4+tt)*4, 4)}, {v(vL16)}, {srd(SWS)}, {s(76+tt)} offen offset:{(k & 3)*1024} sc1")
        XU, GU = 200, 216
        for k in range(8):
            e(f"v_lshlrev_b32 {v(XU+2*k)}, 16, {v(self.X1+k)}\nv_and_b32 {v(XU+2*k+1)}, {s(sHI)}, {v(self.X1+k)}")
            e(f"v_lshlrev_b32 {v(GU+2*k)}, 16, {v(GB+k)}\nv_and_b32 {v(GU+2*k+1)}, {s(sHI)}, {v(GB+k)}")
        def mf(k, ft, tt):
            D = v(ACC + (ft*4+tt)*4, 4)
            return f"{MF} {D}, {a((k*4+ft)*4, 4)}, {v(GF + (k*4+tt)*4, 4)}, {D if k else 0}"
        N6 = int(self.o.get("p6nt", 5))
        for k in range(N6):
            e.wait_vm(tg[k])
            for ft in range(4):
                for tt in range(4): e(mf(k, ft, tt))
        e(f"s_lshl_b32 s82, {s(sW)}, 14\ns_add_u32 s82, s82, {L_RED}\nv_add_u32 v7, s82, {v(vL16)}")
        e.wait_vm(tg[6])
        pend = []
        for ft in range(4):
            n = 0
            ms = [mf(k, ft, tt) for k in range(N6, 7) for tt in range(4)]
            for m in ms:
                e(m)
                if pend and n >= len(ms) - 4: e.ds(pend.pop(0))
                n += 1
            pend = [f"ds_write_b128 v7, {v(ACC + (ft*4+tt)*4, 4)} offset:{(ft*4+tt)*1024}" for tt in range(4)]
        for w_ in pend: e.ds(w_)
        self.stamp("p6gemm")
        e(f"s_lshl_b32 s82, {s(sW)}, 10\ns_add_u32 s82, s82, {L_RED}\nv_add_u32 v7, s82, {v(vL16)}")
        e.barrier()
        R = 16
        tk = {}
        for ft in range(4):
            for src in range(4):
                tk[ft] = e.ds(f"ds_read_b128 {v(R + (ft*4+src)*4, 4)}, v7 offset:{src*16384 + ft*4096}")
        OP = 112
        for ft in range(4):
            e.wait_lg(tk[ft])
            r = R + ft*16
            for q in range(2): e(f"v_pk_add_f32 {v(r+2*q,2)}, {v(r+2*q,2)}, {v(r+4+2*q,2)}\nv_pk_add_f32 {v(r+8+2*q,2)}, {v(r+8+2*q,2)}, {v(r+12+2*q,2)}")
            for q in range(2): e(f"v_pk_add_f32 {v(r+2*q,2)}, {v(r+2*q,2)}, {v(r+8+2*q,2)}")
            for q in range(2):
                k = 2*ft + q
                e(f"v_pk_fma_f32 {v(r+2*q,2)}, {v(GU+2*k,2)}, {v(r+2*q,2)}, {v(XU+2*k,2)}")
            for q in range(2): e(f"v_cvt_pk_bf16_f32 {v(OP+2*ft+q)}, {v(r+2*q)}, {v(r+2*q+1)}")
            if ft == 1: e(f"buffer_store_dwordx4 {v(OP,4)}, v9, {srd(SOUT)}, s67 offen {self.o.get('ost', '').replace('_', ' ')}")
        e("s_mov_b32 exec_hi, 0x0000ffff")
        e(f"buffer_store_dwordx4 {v(OP+4,4)}, v9, {srd(SOUT)}, s67 offen offset:64 {self.o.get('ost', '').replace('_', ' ')}")
        e("s_mov_b32 exec_hi, -1")
        for k in range(int(self.o.get("dummy", 0))): e(f"v_fma_f32 v{16 + k % 8}, v30, v30, v{16 + k % 8}")
        self.stamp("end")
        self.stamps_out()
        e(f"s_add_u32 s82, s2, {s(sW)}\ns_cmp_eq_u32 s82, 0\ns_cbranch_scc0 L_end")
        e(f"v_mov_b32 v5, {s(sN)}\ns_mov_b64 exec, 1\nbuffer_store_dword v5, off, {srd(SWS)}, 0 sc1")

    def build(self):
        e = self.e
        S = self.stamp
        self.prologue()
        S("start")
        ke = int(self.o.get("kearly", 0))
        if self.o.get("xfirst"):
            t0 = e.tvm()
            self.x_dma()
            t1 = e.tvm()
            self.gemv_loads()
        else:
            self.gemv_loads()
            t0 = e.tvm()
            self.x_dma(0, int(self.o.get("xsplit", 7)))
            t1 = t0
        ppa = self.o.get("ppafter")
        if not ppa:
            self.prepass_issue()
            t_pp_n = e.tvm()
        self.wqkv_setup()
        self.wqkv_bg(1, L_K, "wk")
        e.tick(ke)
        S("issued")
        xs = int(self.o.get("xsplit", 7))
        if xs == 7: self.nonce(e.tvm() - t0)
        self.gemv_compute(e.tvm() - t1)
        if xs < 7:
            self.x_dma(xs, 7)
            self.nonce(e.tvm() - t0)
        if ppa:
            if xs == 7: e.wait_vm(self.t_x)
            self.prepass_issue()
            t_pp_n = e.tvm()
        S("gemv")
        late = self.o.get("pplate")
        if not late:
            t_pps = self.prepass_finish(t_pp_n)
            S("ppfin")
        if not self.o.get("xprog"): e.wait_vm(self.t_x)
        if not late: e.barrier()
        if self.o.get("vin") == "ln": self.wqkv_bg(2, L_V, "wv")
        S("xland")
        self.ln1()
        if not late: self.prepass_flag(t_pps)
        S("ln1a")
        self.ln1_finish()
        e.bg_flush()
        S("ln1")
        if late: t_pps = self.prepass_finish(t_pp_n)
        self.mod_wait1()
        e.wait_bg("wk")
        e.barrier()
        S("modpoll")
        if self.o.get("vin") != "ln": self.wqkv_bg(2, L_V, "wv")
        self.modulate()
        e.bg_flush()
        if self.o.get("pplate"): self.prepass_flag(t_pps)
        e.barrier()
        S("modulate")
        self.h_read()
        self.kvq_setup()
        e.barrier()
        S("hread")
        self.wqkv_bg(0, L_X, "wq")
        acc = self.qkv_gemm("k", L_K)
        S("kloop")
        e.wait_bg("wv")
        e.barrier()
        self.k_epilogue(acc)
        S("kgemm")
        t_late = self.late_loads()
        acc = self.qkv_gemm("v", L_V)
        S("vloop")
        e.wait_bg("wq")
        e.barrier()
        self.v_epilogue(acc)
        t_vst = e.tvm()
        S("vgemm")
        fs = int(self.o.get("f1step", 99))
        def hook(st):
            if st == fs:
                e.wait_vm(t_vst)
                self.flag_store("s61")
        acc = self.qkv_gemm("q", L_X, hook=hook)
        S("qloop")
        if fs > 13:
            e.wait_vm(t_vst)
            self.flag_store("s61")
        self.late_check(t_late)
        self.q_epilogue(acc)
        S("qgemm")
        e.barrier()
        self.att_bias()
        e("s_sub_u32 s62, s61, 32")
        self.att_offsets()
        self.spoll("s62", "f1", blk="s59")
        S("kpoll")
        for key, txt in self.att_load_groups(0, 0, "k"):
            e.bg_add(key, txt); e.tick()
        for key, txt in self.att_load_groups(64, 2048, "v"): e.bg_add(key, txt)
        self.wo_bg()
        self.xslice_bg()
        self.att_scores()
        S("scores")
        self.att_softmax_pv(int(self.o.get('smt', 12)))
        e.bg_flush()
        S("softmax")
        self.win_bg(1, 77)
        self.att_epilogue()
        S("opub")
        if self.end_if_stop("o"): return
        self.wsp_setup()
        bgq, e.bgq = e.bgq, []
        self.p3(bgq)
        S("ypub")
        if self.end_if_stop("y"): return
        e.bg_flush()
        self.gelu_consts()
        self.p4_head()
        S("p4head")
        self.win_bg(0, 77)
        self.p4_gemm(1, int(self.o.get("w1t", 4)))
        if not self.o.get("w1late"): e.bg_flush()
        S("z2gemm")
        self.wsp_park(0, 0); t = self.wsp_park(1, 1)
        self.p4_act(1, tick=bool(self.o.get("w1late")))
        e.bg_flush()
        S("z2act")
        self.p4_z2_stats()
        S("z2stats")
        e.wait_lg(t)
        self.wsp_bg(2, 0); self.wsp_bg(3, 1)
        self.uv_mfmas(0)
        split = int(self.o.get("z1split", 6))
        self.p4_gemm(0, 2 if split < 14 else 4, 0, split)
        e.bg_flush()
        S("z1a")
        if self.o.get("z_pre"):
            assert split == 14
            self.uv_extract(0)
            self.wsp_park(2, 0); self.wsp_park(3, 1)
            self.wsp_bg(4, 2); self.wsp_bg(5, 3)
            self.p4_z2_publish()
            S("zpub")
            if self.end_if_stop("z"): return
            self.wsp_bg(6, 0); self.wsp_bg(7, 1)
            self.act_ticks = int(self.o.get('actt', 3))
            self.p4_act(0)
        else:
            self.p4_z2_publish()
            S("zpub")
            if self.end_if_stop("z"): return
            if split < 14: self.p4_gemm(0, 0, split, 14)
            self.uv_extract(0)
            self.wsp_park(2, 0); t = self.wsp_park(3, 1)
            e.barrier()
            S("z1gemm")
            self.wsp_bg(4, 2); self.wsp_bg(5, 3); self.wsp_bg(6, 0); self.wsp_bg(7, 1)
            self.p4_act(0)
        self.p4_z1_pack()
        self.bsp_loads()
        if self.o.get("defer67"): e.bg_flush(("wsp", 5))
        else: e.bg_flush()
        S("z1act")
        self.p5_main()
        S("p5main")
        self.p5_epilogue()
        S("gpub")
        if self.end_if_stop("g"): return
        e.bg_flush()
        self.p6()

    def text(self):
        self.build()
        body = self.e.text()
        if self.o.get("nt"):
            sel = {"x": SX, "qkv": SWQKV, "mod": SWMOD, "wo": SWO, "win": SWIN, "wout": SWOUT, "wsp": SWSP}
            want = sel.keys() if self.o["nt"] in (1, "1", "all") else self.o["nt"].split("+")
            out = []
            for ln in body.split("\n"):
                if "buffer_load" in ln and any(srd(sel[k]) in ln for k in want):
                    ln = ln.replace(" lds", " nt lds") if ln.endswith(" lds") else ln + " nt"
                out.append(ln)
            body = "\n".join(out)
        hdr = open(os.path.join(os.path.dirname(os.path.abspath(__file__)), "header.txt")).read()
        doc = """;
; One persistent launch: 256 workgroups (one per CU, 160 KB LDS, 4 waves with 512 registers each).
;   start : silu(c) @ w_mod on 84 workgroups (published as {bf16 pair, tag} granules); the weights of the later GEMMs
;           are re-laid out once as MFMA fragments in d_ws; LayerNorm 1 + modulation; K, V, Q projections
;   attn  : K/V fragments of the 8 earlier 32-token blocks come through d_ws; exact softmax (true row maximum)
;   P4    : z = gelu(rstd*(y @ W_in - mean*u) + v)  (LayerNorm 2 folded: u = (1+cb) @ W_in, v = sb @ W_in); LayerNorm of z2
;   P5    : g = w_sp @ z2n + b (K split over the waves, w_sp fragments parked in AGPRs), gated = z1*g
; Hand-offs: sc1 stores, s_waitcnt vmcnt, flag word = tag; sc1 polls (bounded), sc1 loads.  The tag is derived from the
; Generated by the author's own generator scripts (straight-line code, counted waits).
"""
        return hdr + doc + f"""; @launch grid=(256,1,1) block=(256,1,1) lds={LDS_BYTES}
.amdgcn_target "amdgcn-amd-amdhsa--gfx950"
.text
.globl {NAME}
.p2align 8
.type {NAME},@function
{NAME}:
{body}L_end:
  s_endpgm
.section .rodata,"a"
.p2align 6
.amdhsa_kernel {NAME}
  .amdhsa_next_free_vgpr 512
  .amdhsa_next_free_sgpr 102
  .amdhsa_accum_offset 256
  .amdhsa_group_segment_fixed_size 0
  .amdhsa_kernarg_size 104
  .amdhsa_user_sgpr_count 2
  .amdhsa_user_sgpr_kernarg_segment_ptr 1
  .amdhsa_system_sgpr_workgroup_id_x 1
.end_amdhsa_kernel
"""

if __name__ == "__main__":
    stop = sys.argv[2] if len(sys.argv) > 2 and sys.argv[2] != "-" else None
    opts = dict(kv.split("=") if "=" in kv else (kv, 1) for kv in sys.argv[3:])
    g = Gen(stop=stop, opts=opts)
    open(sys.argv[1], "w").write(g.text())
    if opts.get("prof"): open(sys.argv[1] + ".stamps", "w").write(" ".join(g.stamps))
```

```python
import sys, struct, os
sys.path.insert(0, os.path.dirname(os.path.abspath(__file__)))
from emit import *
from layout import *

NAME = "adaLN_cond__sliding_block__mixer_gmlp__prompt_kernel"

DBG, SX, SWQKV, SWO, SWIN, SWSP, SBSP, SWOUT, SC, SWMOD, SOUT, SWS = 4, 8, 12, 16, 20, 24, 28, 32, 36, 40, 44, 48
sW, sCl, sJ, sN = 52, 53, 54, 55
sEX = 56
sHI = 100
sTO = 101
vLane, vL16, vRho, vG = 1, 2, 3, 4

def srd(r): return s(r, 4)
def fbits(x): return struct.unpack("<I", struct.pack("<f", x))[0]
def lit(x): return hex(fbits(x))
MF = "v_mfma_f32_16x16x32_bf16"
POLL_MAX = 1 << 17

class Gen:
    def __init__(self, stop=None, opts=None):
        self.e = E()
        self.stop = stop
        self.o = opts or {}
        self.stamps = []

    def stamp(self, name):
        if not self.o.get("prof"): return
        only = self.o.get("only")
        if only and name not in only.split("+") + ["start", "end"]: return
        e = self.e
        k = len(self.stamps); self.stamps.append(name)
        if self.o.get("prof") == "cyc": e("s_memtime s[92:93]\ns_waitcnt lgkmcnt(0)")
        else: e("s_memrealtime s[92:93]\ns_waitcnt lgkmcnt(0)")
        e(f"v_writelane_b32 v0, s92, {k}")

    def stamps_out(self):
        if not self.o.get("prof"): return
        e = self.e
        e(f"s_lshl_b32 s90, s2, 2\ns_add_u32 s90, s90, {s(sW)}\ns_lshl_b32 s90, s90, 8\ns_add_u32 s90, s90, {WS_DBG}")
        e(f"v_lshlrev_b32 v5, 2, {v(vLane)}")
        e(f"buffer_store_dword v0, v5, {srd(SWS)}, s90 offen")
        if self.o.get("dbgout"):
            L = e.label("dbgout")
            e(f"s_cmp_eq_u32 s2, {self.o['dbgout']}\ns_cbranch_scc0 {L}\ns_cmp_eq_u32 {s(sW)}, 0\ns_cbranch_scc0 {L}")
            e(f"v_readlane_b32 s90, v0, 0\nv_subrev_u32 v6, s90, v0\ns_mov_b32 exec_lo, 0xffff\ns_mov_b32 exec_hi, 0")
            e(f"buffer_store_dword v6, v5, {srd(DBG)}, 0 offen\ns_mov_b64 exec, -1")
            e(f"{L}:")

    def end_if_stop(self, name):
        if self.stop == name:
            self.e.bg_flush()
            self.e("s_waitcnt vmcnt(0) lgkmcnt(0)\ns_branch L_end")
            return True
        return False

    def timeout_mark(self):
        e = self.e
        e(f"v_mov_b32 v5, {e.nlabel}\nv_mov_b32 v6, 0")
        e(f"buffer_store_dword v5, v6, {srd(DBG)}, 0 offen")

    def poll(self, loads, checks, stem="poll"):
        e = self.e
        L, Lok = e.label(stem), e.label(stem + "ok")
        fixed = []
        k = 0
        for vd, n, va, so, off in loads:
            if isinstance(so, int):
                e(f"s_mov_b32 {s(92+k)}, {so}"); so = s(92+k); k += 1
            fixed.append((vd, n, va, so, off))
        assert k <= 4
        e(f"s_mov_b32 {s(sTO)}, 0")
        e(f"{L}:")
        st = e.snap()
        for vd, n, va, so, off in fixed:
            op = {1: "buffer_load_dword", 2: "buffer_load_dwordx2", 4: "buffer_load_dwordx4"}[n]
            e(f"{op} {v(vd, n)}, {v(va)}, {srd(SWS)}, {so} offen offset:{off} sc1")
        e("s_waitcnt vmcnt(0)")
        self.tags_differ([c for c, _ in checks])
        e(f"s_cmp_eq_u64 vcc, 0\ns_cbranch_scc1 {Lok}")
        e(f"s_add_u32 {s(sTO)}, {s(sTO)}, 1\ns_cmp_lt_u32 {s(sTO)}, {POLL_MAX}\ns_cbranch_scc1 {L}")
        self.timeout_mark()
        e(f"{Lok}:")
        e.restore(st)
        e.vm_done = e.vm_issued

    def tags_differ(self, regs):
        e = self.e
        for r in regs: e(f"v_xor_b32 {v(r)}, {s(sN)}, {v(r)}")
        acc, rest = regs[0], regs[1:]
        while rest:
            if len(rest) >= 2:
                e(f"v_or3_b32 {v(acc)}, {v(acc)}, {v(rest[0])}, {v(rest[1])}"); rest = rest[2:]
            else:
                e(f"v_or_b32 {v(acc)}, {v(acc)}, {v(rest[0])}"); rest = rest[1:]
        e(f"v_cmp_ne_u32 vcc, 0, {v(acc)}")

    def spoll(self, soff, stem, blk=None, fast=False):
        e = self.e
        if stem in self.o.get("vpoll", "").split("+"):
            return self.vpoll8(soff, stem, fast and self.o.get("fast"), blk)
        fast = fast and self.o.get("fast")
        L, Lok = e.label(stem), e.label(stem + "ok")
        e(f"s_add_u32 s96, {s(SWS)}, {soff}\ns_addc_u32 s97, {s(SWS+1)}, 0")
        e(f"s_mov_b32 s98, {s(sN)}\ns_mov_b32 s99, {s(sN)}\ns_mov_b32 {s(sTO)}, 0")
        e(f"{L}:")
        e("s_load_dwordx8 s[84:91], s[96:97], 0 glc")
        if fast: e(f"s_load_dwordx8 s[12:19], s[96:97], {WS_FAST - WS_F2} glc")
        e("s_waitcnt lgkmcnt(0)")
        for k in range(4): e(f"s_xor_b64 s[{84+2*k}:{85+2*k}], s[{84+2*k}:{85+2*k}], s[98:99]")
        if fast:
            for k in range(4): e(f"s_xor_b64 s[{12+2*k}:{13+2*k}], s[{12+2*k}:{13+2*k}], s[98:99]")
            for i in range(8): e(f"s_min_u32 {s(84+i)}, {s(84+i)}, {s(12+i)}")
        if blk:
            for i in range(8): e(f"s_add_u32 s82, {blk}, {i}\ns_cmp_ge_u32 s82, 8\ns_cselect_b32 {s(84+i)}, {s(84+i)}, 0")
        e("s_or_b64 s[84:85], s[84:85], s[86:87]\ns_or_b64 s[88:89], s[88:89], s[90:91]\ns_or_b64 s[84:85], s[84:85], s[88:89]")
        e(f"s_cmp_eq_u64 s[84:85], 0\ns_cbranch_scc1 {Lok}")
        e(f"s_add_u32 {s(sTO)}, {s(sTO)}, 1\ns_cmp_lt_u32 {s(sTO)}, {POLL_MAX}\ns_cbranch_scc1 {L}")
        st = e.snap()
        self.timeout_mark()
        e.restore(st)
        e(f"{Lok}:")

    def vpoll8(self, soff, stem, fast, blk=None):
        e = self.e
        L, Lok = e.label(stem), e.label(stem + "ok")
        one = stem in self.o.get("onepoll", "").split("+")
        if one: e(f"s_cmp_eq_u32 {s(sW)}, 3\ns_cbranch_scc0 {Lok}")
        e(f"v_and_b32 v5, 7, {v(vLane)}\nv_lshlrev_b32 v11, 2, v5")
        if fast: e(f"v_bfe_u32 v6, {v(vLane)}, 3, 1\nv_mul_u32_u24 v6, {WS_FAST - WS_F2}, v6\nv_add_u32 v11, v11, v6")
        if blk: e(f"s_sub_u32 s83, 8, {blk}\ns_max_i32 s83, s83, 0\ns_lshl_b32 s83, 1, s83\ns_sub_u32 s83, s83, 1")
        e(f"s_mov_b32 {s(sTO)}, 0")
        e(f"{L}:")
        st = e.snap()
        e(f"buffer_load_dword v10, v11, {srd(SWS)}, {soff} offen sc1\ns_waitcnt vmcnt(0)")
        e(f"v_cmp_eq_u32 vcc, {s(sN)}, v10")
        if fast: e(f"s_lshr_b32 s82, vcc_lo, 8\ns_or_b32 s82, s82, vcc_lo")
        else: e(f"s_mov_b32 s82, vcc_lo")
        if blk: e("s_or_b32 s82, s82, s83")
        e(f"s_and_b32 s82, s82, 0xff\ns_cmp_eq_u32 s82, 0xff\ns_cbranch_scc1 {Lok}")
        if self.o.get("psleep"): e(f"s_sleep {self.o['psleep']}")
        e(f"s_add_u32 {s(sTO)}, {s(sTO)}, 1\ns_cmp_lt_u32 {s(sTO)}, {POLL_MAX}\ns_cbranch_scc1 {L}")
        self.timeout_mark()
        e(f"{Lok}:")
        e.restore(st)
        if one: e("s_barrier")
        else: e.vm_done = e.vm_issued

    def flag_store(self, soff):
        e = self.e
        e(f"v_mov_b32 v5, {s(sN)}\ns_mov_b64 exec, 1")
        e(f"buffer_store_dword v5, off, {srd(SWS)}, {soff} sc1")
        e("s_mov_b64 exec, -1")

    def publish(self, soff, pre=0, post=0, name=None, fast=True):
        e = self.e
        t = e.tvm()
        if name: self.stamp(name + "_st")
        e.tick(pre)
        e.wait_vm(t)
        if name: self.stamp(name + "_dr")
        e.barrier()
        L = e.label("pub")
        st = e.snap()
        e(f"s_cmp_eq_u32 {s(sW)}, 0\ns_cbranch_scc0 {L}")
        if fast and self.o.get("fast"):
            e(f"s_add_u32 s82, {soff}, {WS_FAST - WS_F2}\nv_mov_b32 v5, {s(sN)}\ns_mov_b64 exec, 1")
            e(f"buffer_store_dword v5, off, {srd(SWS)}, s82")
            e(f"buffer_store_dword v5, off, {srd(SWS)}, {soff} sc1\ns_mov_b64 exec, -1")
        else:
            self.flag_store(soff)
        e(f"{L}:")
        e.restore(st)
        if name: self.stamp(name + "_fl")
        e.tick(post)

    def allreduce_g(self, r, tmp, op):
        e = self.e
        o = {"add": "v_add_f32", "max": "v_max_f32"}[op]
        e(f"v_mov_b32 {v(tmp)}, {v(r)}\nv_permlane32_swap_b32 {v(r)}, {v(tmp)}\n{o} {v(r)}, {v(r)}, {v(tmp)}")
        e(f"v_mov_b32 {v(tmp)}, {v(r)}\nv_permlane16_swap_b32 {v(r)}, {v(tmp)}\n{o} {v(r)}, {v(r)}, {v(tmp)}")

    def allreduce_g2(self, r0, r1, t0, t1, op):
        e = self.e
        o = {"add": "v_add_f32", "max": "v_max_f32"}[op]
        for sw in ("v_permlane32_swap_b32", "v_permlane16_swap_b32"):
            e(f"v_mov_b32 {v(t0)}, {v(r0)}\nv_mov_b32 {v(t1)}, {v(r1)}\n{sw} {v(r0)}, {v(t0)}\n{sw} {v(r1)}, {v(t1)}")
            e(f"{o} {v(r0)}, {v(r0)}, {v(t0)}\n{o} {v(r1)}, {v(r1)}, {v(t1)}")

    def gemm_loop(self, nsteps, reads, mfmas, depth=2, pre=None, tick_every=0, tick_max=10**9, first=0):
        e = self.e
        tk = {}
        for st in range(first, min(first + depth, nsteps)):
            for r in reads(st): tk[st] = e.ds(r)
        k = 0
        for st in range(first, nsteps):
            pend = list(reads(st + depth)) if st + depth < nsteps else []
            if pre: pre(st)
            e.wait_lg(tk.get(st))
            ms = mfmas(st)
            for n, m in enumerate(ms):
                e(m); k += 1
                if pend and (len(pend) >= len(ms) - n or n % max(1, len(ms) // max(1, len(reads(st + depth)))) == 0):
                    tk[st + depth] = e.ds(pend.pop(0))
                elif tick_every and k % tick_every == 0 and tick_max > 0 and e.bg_left():
                    e.tick(); tick_max -= 1
            for r in pend: tk[st + depth] = e.ds(r)

    def prologue(self):
        e = self.e
        e("s_cmp_ge_u32 s2, 256\ns_cbranch_scc1 L_end")
        e("s_load_dwordx16 s[56:71], s[0:1], 0\ns_load_dwordx8 s[72:79], s[0:1], 64\ns_load_dwordx2 s[80:81], s[0:1], 96")
        if not self.o.get("nopf"): self.code_prefetch()
        e(f"v_and_b32 {v(vLane)}, 63, v0\nv_lshrrev_b32 v5, 6, v0")
        e(f"v_readfirstlane_b32 {s(sW)}, v5")
        e(f"v_lshlrev_b32 {v(vL16)}, 4, {v(vLane)}\nv_and_b32 {v(vRho)}, 15, {v(vLane)}\nv_lshrrev_b32 {v(vG)}, 4, {v(vLane)}")
        if self.o.get("map", "b") == "b":
            e("s_and_b32 s82, s2, 7\ns_lshr_b32 s83, s82, 1\ns_and_b32 s84, s82, 1\ns_lshr_b32 s85, s2, 3")
            e(f"s_lshr_b32 s86, s85, 2\ns_lshl_b32 s83, s83, 3\ns_add_u32 {s(sCl)}, s83, s86")
            e(f"s_and_b32 s85, s85, 3\ns_lshl_b32 s84, s84, 2\ns_add_u32 {s(sJ)}, s84, s85")
        elif self.o.get("map") == "x":
            e(f"s_lshr_b32 {s(sCl)}, s2, 3\ns_and_b32 {s(sJ)}, s2, 7")
        else:
            e("s_and_b32 s82, s2, 7\ns_lshl_b32 s82, s82, 2\ns_lshr_b32 s85, s2, 3\ns_lshr_b32 s86, s85, 3")
            e(f"s_add_u32 {s(sCl)}, s82, s86\ns_and_b32 {s(sJ)}, s85, 7")
        e(f"s_mov_b32 {s(sHI)}, 0xffff0000")
        e("s_waitcnt lgkmcnt(0)")
        ptr = {SWS: (80, WS_SIZE), SC: (72, 896), SWMOD: (74, 2408448), SX: (56, 1835008), SWQKV: (58, 1204224), SWO: (60, 401408),
               SWIN: (64, 1605632), SWSP: (66, 8388608), SBSP: (68, 4096), SWOUT: (70, 802816), SOUT: (76, 1835008), DBG: (78, 256)}
        for r, (p, n) in ptr.items():
            e(f"s_mov_b32 {s(r)}, {s(p)}\ns_mov_b32 {s(r+1)}, {s(p+1)}\ns_mov_b32 {s(r+2)}, {n}\ns_mov_b32 {s(r+3)}, 0x20000")
        if self.o.get("wsoff"):
            e(f"s_add_u32 {s(SWS)}, {s(SWS)}, {int(self.o['wsoff'], 0)}\ns_addc_u32 {s(SWS+1)}, {s(SWS+1)}, 0")
        self.t_epoch = e.vm(f"buffer_load_dword v6, off, {srd(SWS)}, 0 sc1")

    def code_prefetch(self):
        e = self.e
        lo, hi = int(self.o.get("pf_lo", 240)), int(self.o.get("pf_hi", 256))
        st = e.snap()
        e(f"s_sub_u32 s82, s2, {lo}\ns_cmp_lt_u32 s82, {hi - lo}\ns_cbranch_scc0 L_nopf")
        e("s_getpc_b64 s[84:85]\nL_pf_pc:")
        e(f"s_sub_u32 s84, s84, L_pf_pc-{NAME}\ns_subb_u32 s85, s85, 0")
        e("v_lshlrev_b32 v5, 7, v0")
        e(f"s_mov_b32 s83, L_end-{NAME}")
        for k in range(2):
            e(f"v_add_u32 v6, {k*32768}, v5\nv_min_u32 v6, s83, v6\nglobal_load_dword a255, v6, s[84:85]")
        e("L_nopf:")
        e.restore(st)

    def nonce(self, nyounger):
        e = self.e
        e(f"s_waitcnt vmcnt({nyounger})")
        e("v_readfirstlane_b32 s82, v6")
        e(f"s_mul_i32 s82, s82, 0x9E3779B1\ns_add_u32 {s(sN)}, s82, 0x7F4A7C15")

    GW, GC, GA = 16, 44, 52
    def gemv_loads16(self):
        e = self.e
        GW, GC = self.GW, self.GC
        st = e.snap()
        e("s_sub_u32 s63, s2, 200\ns_sub_u32 s82, s2, 32\ns_cmp_ge_u32 s2, 200\ns_cselect_b32 s63, s63, s82")
        e("s_cmp_ge_u32 s2, 88\ns_cbranch_scc0 L_nogemv_ld")
        e(f"v_lshrrev_b32 v7, 1, {v(vLane)}\nv_mul_u32_u24 v8, 5376, v7\nv_and_b32 v9, 1, {v(vLane)}\nv_lshlrev_b32 v9, 4, v9\nv_add_u32 v8, v8, v9")
        e("v_lshlrev_b32 v7, 1, v7")
        e(f"s_mul_i32 s82, {s(sW)}, {112*5376}\ns_lshl_b32 s83, s63, 5\ns_add_u32 s82, s82, s83\ns_mul_i32 s83, {s(sW)}, 224")
        for n in range(4):
            e(f"buffer_load_dwordx4 {v(GW+4*n,4)}, v8, {srd(SWMOD)}, s82 offen")
            if n < 3: e(f"s_add_u32 s82, s82, {32*5376}")
        for n in range(4):
            e(f"buffer_load_ushort {v(GC+n)}, v7, {srd(SC)}, s83 offen offset:{64*n}")
        e("L_nogemv_ld:")
        e.restore(st)

    def gemv_compute16(self, nyounger):
        e = self.e
        GW, GC, GA = self.GW, self.GC, self.GA
        st = e.snap()
        e("s_cmp_ge_u32 s2, 88\ns_cbranch_scc0 L_nogemv")
        e(f"s_waitcnt vmcnt({min(nyounger, 63)})")
        for n in range(4): e(f"v_lshlrev_b32 {v(GC+n)}, 16, {v(GC+n)}")
        for n in range(4): e(f"v_mul_f32 {v(60+n)}, {lit(-1.4426950408889634)}, {v(GC+n)}")
        for n in range(4): e(f"v_exp_f32 {v(60+n)}, {v(60+n)}")
        for n in range(4): e(f"v_add_f32 {v(60+n)}, 1.0, {v(60+n)}")
        for n in range(4): e(f"v_rcp_f32 {v(60+n)}, {v(60+n)}")
        for n in range(4): e(f"v_mul_f32 {v(60+n)}, {v(60+n)}, {v(GC+n)}")
        for n in range(4): e(f"v_cvt_pk_bf16_f32 {v(60+n)}, {v(60+n)}, {v(60+n)}")
        e(f"v_cmp_gt_u32 vcc, 32, {v(vLane)}\nv_cndmask_b32 v63, 0, v63, vcc")
        e("s_mov_b32 s94, 0x05040100\ns_mov_b32 s95, 0x07060302")
        for n in (0, 2): e(f"v_perm_b32 {v(GC+n)}, {v(60+n+1)}, {v(60+n)}, s94")
        for n in (0, 2):
            for q in range(4):
                w0, w1 = GW + 4*n + q, GW + 4*(n+1) + q
                e(f"v_perm_b32 v68, {v(w1)}, {v(w0)}, s94\nv_perm_b32 v69, {v(w1)}, {v(w0)}, s95")
                for h_, t_ in ((0, 68), (1, 69)):
                    acc = v(GA+2*q+h_)
                    e(f"v_dot2_f32_bf16 {acc}, {v(t_)}, {v(GC+n)}, {acc if n else 0}")
        for rot in (2, 4, 8):
            for k in range(8):
                e(f"v_add_f32_dpp {v(GA+k)}, {v(GA+k)}, {v(GA+k)} row_ror:{rot} row_mask:0xf bank_mask:0xf")
        e(f"v_lshlrev_b32 v60, 6, {v(vG)}\nv_and_b32 v61, 1, {v(vLane)}\nv_lshlrev_b32 v61, 5, v61\nv_add_u32 v60, v60, v61")
        e(f"s_lshl_b32 s82, {s(sW)}, 8\ns_add_u32 s82, s82, {L_GS}\nv_add_u32 v60, s82, v60")
        e(f"ds_write_b128 v60, {v(GA,4)}\nds_write_b128 v60, {v(GA+4,4)} offset:16")
        e("s_waitcnt lgkmcnt(0)\ns_barrier")
        e(f"s_cmp_eq_u32 {s(sW)}, 0\ns_cbranch_scc0 L_nogemv")
        e(f"v_lshlrev_b32 v60, 2, {v(vRho)}\nv_lshlrev_b32 v61, 8, {v(vG)}\nv_add_u32 v60, v60, v61\nv_add_u32 v60, {L_GS}, v60")
        for p in range(4): e(f"ds_read_b32 {v(GA+p)}, v60 offset:{p*64}")
        e("s_sub_u32 s82, s63, 28\ns_cmp_lt_u32 s82, 28\ns_cselect_b32 s83, 1, 0\ns_sub_u32 s82, s63, 112\ns_cmp_lt_u32 s82, 28\ns_cselect_b32 s83, 1, s83")
        e("s_waitcnt lgkmcnt(0)")
        e(f"v_add_f32 {v(GA)}, {v(GA)}, {v(GA+1)}\nv_add_f32 {v(GA+2)}, {v(GA+2)}, {v(GA+3)}\nv_add_f32 {v(GA)}, {v(GA)}, {v(GA+2)}")
        self.allreduce_g(GA, 61, "add")
        e(f"v_cvt_pk_bf16_f32 v60, {v(GA)}, {v(GA)}\nv_lshlrev_b32 v60, 16, v60")
        e("s_cmp_eq_u32 s83, 1\ns_cbranch_scc0 L_gemv_noplus")
        e("v_add_f32 v60, 1.0, v60\nv_cvt_pk_bf16_f32 v60, v60, v60\nv_lshlrev_b32 v60, 16, v60")
        e("L_gemv_noplus:")
        e("v_mov_b32_dpp v61, v60 quad_perm:[1,0,3,2] row_mask:0xf bank_mask:0xf")
        e(f"v_cvt_pk_bf16_f32 v62, v60, v61\nv_mov_b32 v63, {s(sN)}")
        e(f"v_lshlrev_b32 v60, 2, {v(vRho)}")
        e(f"s_lshl_b32 s82, s63, 6\ns_add_u32 s82, s82, {WS_MODG}")
        e("s_mov_b32 exec_lo, 0x5555\ns_mov_b32 exec_hi, 0")
        e(f"buffer_store_dwordx2 v[62:63], v60, {srd(SWS)}, s82 offen sc1")
        e("s_mov_b64 exec, -1")
        e("L_nogemv:")
        e.restore(st)

    def gemv_loads(self):
        if self.o.get("g16"): return self.gemv_loads16()
        e = self.e
        GW, GC = self.GW, self.GC
        st = e.snap()
        e("s_sub_u32 s63, s2, 228\ns_sub_u32 s82, s2, 144\ns_cmp_ge_u32 s2, 228\ns_cselect_b32 s63, s63, s82")
        e("s_cmp_ge_u32 s2, 172\ns_cbranch_scc0 L_nogemv_ld")
        e(f"v_lshrrev_b32 v7, 2, {v(vLane)}\nv_mul_u32_u24 v8, 5376, v7\nv_and_b32 v9, 3, {v(vLane)}\nv_lshlrev_b32 v9, 4, v9\nv_add_u32 v8, v8, v9")
        e("v_lshlrev_b32 v7, 1, v7")
        e(f"s_mul_i32 s82, {s(sW)}, {112*5376}\ns_lshl_b32 s83, s63, 6\ns_add_u32 s82, s82, s83\ns_mul_i32 s83, {s(sW)}, 224")
        for n in range(7):
            e(f"buffer_load_dwordx4 {v(GW+4*n,4)}, v8, {srd(SWMOD)}, s82 offen")
            if n < 6: e(f"s_add_u32 s82, s82, {16*5376}")
        for n in range(7):
            e(f"buffer_load_ushort {v(GC+n)}, v7, {srd(SC)}, s83 offen offset:{32*n}")
        e("L_nogemv_ld:")
        e.restore(st)

    def x_dma(self, cb0=0, cb1=7):
        e = self.e
        if cb0 == 0:
            e(f"v_lshrrev_b32 v7, 5, {v(vLane)}\nv_lshlrev_b32 v7, 3, v7\nv_bfe_u32 v8, {v(vLane)}, 3, 2\nv_add_u32 v7, v7, v8\nv_mul_u32_u24 v7, 896, v7")
            e(f"v_and_b32 v8, 7, {v(vLane)}\nv_xor_b32 v8, v8, {v(vG)}\nv_xor_b32 v9, 4, v8\nv_lshlrev_b32 v8, 4, v8\nv_lshlrev_b32 v9, 4, v9")
            e("v_add_u32 v8, v7, v8\nv_add_u32 v9, v7, v9")
            e(f"s_lshl_b32 s77, {s(sCl)}, 6\ns_lshr_b32 s83, {s(sW)}, 1\ns_lshl_b32 s83, s83, 5\ns_add_u32 s77, s77, s83\ns_and_b32 s83, {s(sW)}, 1\ns_lshl_b32 s83, s83, 2\ns_add_u32 s77, s77, s83")
            e(f"s_mul_i32 s77, s77, 896\ns_lshl_b32 s78, {s(sW)}, 11\ns_add_u32 s78, s78, {L_X}")
            self.t_xcb = {}
        for cb in range(cb0, cb1):
            for par in range(2):
                e(f"s_add_u32 m0, s78, {cb*8192 + par*1024}\ns_add_u32 s83, s77, {par*16*896 + cb*128}")
                e(f"buffer_load_dwordx4 {v(8+par)}, {srd(SX)}, s83 offen lds")
            self.t_xcb[cb] = e.tvm()
        self.t_x = e.tvm()

    def w7_lane(self, dst, stride):
        e = self.e
        e(f"v_mul_u32_u24 v10, 37, {v(vLane)}\nv_lshrrev_b32 v10, 8, v10\nv_mul_u32_u24 v11, 7, v10\nv_sub_u32 v11, {v(vLane)}, v11\nv_lshlrev_b32 v11, 4, v11")
        e(f"v_mul_u32_u24 v10, {stride}, v10\nv_add_u32 {v(dst)}, v10, v11")

    vWo = 12
    def wqkv_setup(self):
        e = self.e
        self.w7_lane(self.vWo, 2688)
        e(f"s_mul_i32 s75, {s(sW)}, {112*2688}\ns_mul_i32 s82, {s(sJ)}, 112\ns_add_u32 s75, s75, s82\ns_mul_i32 s76, {s(sW)}, {112*112}")

    def wqkv_bg(self, T, lbase, key):
        e = self.e
        for n in range(14):
            e.bg_add(key, f"s_add_u32 s81, s75, {T*896 + n*8*2688}\ns_add_u32 m0, s76, {lbase + n*896}\ns_mov_b32 exec_hi, 0x00ffffff\nbuffer_load_dwordx4 {v(self.vWo)}, {srd(SWQKV)}, s81 offen lds\ns_mov_b32 exec_hi, -1")

    L_PP = L_V + 50176 - 16384
    def pp_slot(self):
        e = self.e
        if self.o.get("g16"):
            e(f"s_lshl_b32 s86, s2, 2\ns_add_u32 s86, s86, {s(sW)}")
            e(f"s_sub_u32 s87, s2, 88\ns_lshl_b32 s88, s87, 1\ns_add_u32 s88, s88, {s(sW)}\ns_add_u32 s88, s88, 351")
            e(f"s_add_u32 s87, s87, 688\ns_cmp_lt_u32 s87, 768\ns_cselect_b32 s87, s87, 9999\ns_cmp_eq_u32 {s(sW)}, 0\ns_cselect_b32 s88, s87, s88")
            e(f"s_cmp_eq_u32 {s(sW)}, 3\ns_cselect_b32 s88, 9999, s88\ns_cmp_lt_u32 s2, 88\ns_cselect_b32 s86, s86, s88")
        elif self.o.get("ppmix"):
            e(f"s_lshl_b32 s86, s2, 2\ns_add_u32 s86, s86, {s(sW)}\ns_add_u32 s87, s2, {688 - 172}\ns_cmp_eq_u32 {s(sW)}, 1\ns_cselect_b32 s87, s87, 9999")
            e("s_cmp_lt_u32 s2, 172\ns_cselect_b32 s86, s86, s87")
        elif self.o.get("pplate"):
            e(f"s_mul_i32 s86, s2, 3\ns_add_u32 s86, s86, {s(sW)}\ns_cmp_lt_u32 {s(sW)}, 3\ns_cselect_b32 s86, s86, 9999")
        else:
            e(f"s_lshl_b32 s86, s2, 2\ns_add_u32 s86, s86, {s(sW)}")

    def prepass_issue(self):
        e = self.e
        st = e.snap()
        self.pp_slot()
        e(f"s_mul_i32 s87, {s(sW)}, 4096\ns_add_u32 s87, s87, {self.L_PP}")
        e("s_mov_b32 m0, s87")
        e("s_cmp_lt_u32 s86, 392\ns_cbranch_scc0 L_pp_not_win_i")
        e(f"s_mul_hi_u32 s82, s86, {(1<<32)//28+1}\ns_mul_i32 s83, s82, 28\ns_sub_u32 s83, s86, s83")
        e(f"v_lshrrev_b32 v10, 3, {v(vLane)}\nv_mul_u32_u24 v10, 3584, v10\nv_and_b32 v11, 7, {v(vLane)}\nv_lshlrev_b32 v11, 4, v11\nv_add_u32 v10, v10, v11")
        e(f"s_mul_i32 s84, s82, {32*3584}\ns_lshl_b32 s85, s83, 7\ns_add_u32 s84, s84, s85")
        for n in range(4):
            e(f"buffer_load_dwordx4 v10, {srd(SWIN)}, s84 offen lds")
            if n < 3: e(f"s_add_u32 s84, s84, {8*3584}\ns_add_u32 m0, m0, 1024")
        e("s_branch L_pp_issued")
        e("L_pp_not_win_i:")
        e("s_cmp_lt_u32 s86, 744\ns_cbranch_scc0 L_pp_issued")
        self.w7_lane(13, 896)
        e("s_mov_b32 exec_hi, 0x00ffffff")
        e("s_cmp_lt_u32 s86, 520\ns_cbranch_scc0 L_pp_wout_i")
        e("s_sub_u32 s82, s86, 392\ns_lshr_b32 s83, s82, 4\ns_and_b32 s82, s82, 15")
        e(f"s_mul_i32 s84, s82, {28*896}\ns_mul_i32 s85, s83, 112\ns_add_u32 s84, s84, s85")
        for n in range(4):
            e(f"buffer_load_dwordx4 v13, {srd(SWO)}, s84 offen lds")
            if n < 3: e(f"s_add_u32 s84, s84, {8*896}\ns_add_u32 m0, m0, 896")
        e("s_branch L_pp_issued7")
        e("L_pp_wout_i:")
        e(f"s_sub_u32 s82, s86, 520\ns_mul_hi_u32 s83, s82, {(1<<32)//28+1}\ns_mul_i32 s84, s83, 28\ns_sub_u32 s82, s82, s84")
        e(f"s_mul_i32 s84, s82, {32*896}\ns_mul_i32 s85, s83, 112\ns_add_u32 s84, s84, s85")
        for n in range(4):
            e(f"buffer_load_dwordx4 v13, {srd(SWOUT)}, s84 offen lds")
            if n < 3: e(f"s_add_u32 s84, s84, {8*896}\ns_add_u32 m0, m0, 896")
        e("L_pp_issued7:")
        e("s_mov_b32 exec_hi, -1")
        e("L_pp_issued:")
        e.restore(st)

    def prepass_finish(self, t_after):
        e = self.e
        e.wait_vm(t_after, force=True)
        st = e.snap()
        R = self.PPR
        self.pp_slot()
        e(f"s_cmp_lt_u32 s86, 744\ns_cbranch_scc0 L_pp_done")
        e(f"s_mul_i32 s87, {s(sW)}, 4096\ns_add_u32 s87, s87, {self.L_PP}")
        e(f"v_lshrrev_b32 v10, 2, {v(vRho)}\nv_and_b32 v11, 3, {v(vRho)}")
        e("s_cmp_lt_u32 s86, 392\ns_cbranch_scc0 L_pp_not_win_f")
        e(f"s_mul_hi_u32 s82, s86, {(1<<32)//28+1}\ns_mul_i32 s83, s82, 28\ns_sub_u32 s83, s86, s83")
        e(f"v_lshlrev_b32 v14, 3, {v(vG)}\nv_add_u32 v14, v14, v10\nv_lshlrev_b32 v14, 7, v14\nv_lshlrev_b32 v11, 3, v11\nv_add_u32 v14, v14, v11\nv_add_u32 v14, s87, v14")
        for q in range(4):
            for par in range(2):
                e(f"ds_read_b64_tr_b16 {v(R+4*q+2*par,2)}, v14 offset:{par*512 + q*32}")
        for q in range(4):
            e(f"s_lshl_b32 s84, s83, 2\ns_add_u32 s84, s84, {q}\ns_cmp_ge_u32 s84, 56\ns_cselect_b32 s85, 1, 0\ns_mul_i32 s88, s85, 56\ns_sub_u32 s84, s84, s88")
            e(f"s_mul_i32 s88, s84, 37\ns_lshr_b32 s88, s88, 8\ns_mul_i32 s89, s88, 7\ns_sub_u32 s84, s84, s89")
            e(f"s_lshl_b32 s88, s88, 1\ns_add_u32 s88, s88, s85\ns_lshl_b32 s88, s88, 3\ns_add_u32 s88, s88, s84\ns_mul_i32 s88, s88, 14\ns_add_u32 s88, s88, s82")
            e(f"s_lshl_b32 s88, s88, 10\ns_add_u32 s88, s88, {WS_WIN}")
            if q == 0: e("s_waitcnt lgkmcnt(0)")
            e(f"buffer_store_dwordx4 {v(R+4*q,4)}, {v(vL16)}, {srd(SWS)}, s88 offen sc1")
        e("s_branch L_pp_done")
        e("L_pp_not_win_f:")
        e("s_cmp_lt_u32 s86, 744\ns_cbranch_scc0 L_pp_done")
        e(f"v_cmp_gt_u32 vcc, 12, {v(vRho)}\nv_cndmask_b32 v15, 0, -1, vcc")
        e("s_cmp_lt_u32 s86, 520\ns_cbranch_scc0 L_pp_wout_f")
        e("s_sub_u32 s88, s86, 392")
        e(f"v_lshlrev_b32 v14, 2, {v(vG)}\nv_add_u32 v14, v14, v10\nv_mul_u32_u24 v14, 112, v14\nv_lshlrev_b32 v11, 4, v11\nv_add_u32 v14, v14, v11\nv_add_u32 v14, s87, v14")
        for ft in range(4):
            for par in range(2):
                e(f"ds_read_b64_tr_b16 {v(R+4*ft+2*par,2)}, v14 offset:{par*16*112 + 64*(ft>>1) + 8*(ft&1)}")
        e(f"v_cmp_gt_u32 vcc, 3, {v(vG)}\nv_cndmask_b32 v13, 0, -1, vcc")
        e("s_waitcnt lgkmcnt(0)")
        for ft in range(4):
            e(f"v_and_b32 {v(R+4*ft+2)}, v13, {v(R+4*ft+2)}\nv_and_b32 {v(R+4*ft+3)}, v13, {v(R+4*ft+3)}")
        e(f"s_lshl_b32 s88, s88, 12\ns_add_u32 s88, s88, {WS_WO}")
        e("s_branch L_pp_st7")
        e("L_pp_wout_f:")
        e("s_sub_u32 s88, s86, 520")
        e(f"v_lshlrev_b32 v14, 3, {v(vG)}\nv_add_u32 v14, v14, v10\nv_mul_u32_u24 v14, 112, v14\nv_lshlrev_b32 v11, 4, v11\nv_add_u32 v14, v14, v11\nv_add_u32 v14, s87, v14")
        for ft in range(4):
            for par in range(2):
                e(f"ds_read_b64_tr_b16 {v(R+4*ft+2*par,2)}, v14 offset:{par*4*112 + 64*(ft>>1) + 8*(ft&1)}")
        e("s_waitcnt lgkmcnt(0)")
        e(f"s_lshl_b32 s88, s88, 12\ns_add_u32 s88, s88, {WS_WOUT}")
        e("L_pp_st7:")
        for ft in (2, 3):
            for k in range(4): e(f"v_and_b32 {v(R+4*ft+k)}, v15, {v(R+4*ft+k)}")
        for ft in range(4):
            e(f"buffer_store_dwordx4 {v(R+4*ft,4)}, {v(vL16)}, {srd(SWS)}, s88 offen offset:{ft*1024} sc1")
        e("L_pp_done:")
        e.restore(st)
        return e.tvm()

    def prepass_flag(self, t_after):
        e = self.e
        e.wait_vm(t_after, force=True)
        st = e.snap()
        self.pp_slot()
        e(f"s_cmp_lt_u32 s86, 768\ns_cbranch_scc0 L_pp_flagged")
        e(f"s_lshl_b32 s88, s86, 2\ns_add_u32 s88, s88, {WS_FW}")
        self.flag_store("s88")
        e("L_pp_flagged:")
        e.restore(st)

    def gemv_compute(self, nyounger):
        if self.o.get("g16"): return self.gemv_compute16(nyounger)
        e = self.e
        GW, GC, GA = self.GW, self.GC, self.GA
        st = e.snap()
        e("s_cmp_ge_u32 s2, 172\ns_cbranch_scc0 L_nogemv")
        e(f"s_waitcnt vmcnt({min(nyounger, 63)})")
        if int(self.o.get("xsplit", 7)) < 7: self.nonce(min(nyounger, 63))
        for n in range(7):
            c = GC + n
            e(f"v_lshlrev_b32 {v(c)}, 16, {v(c)}")
        for n in range(7): e(f"v_mul_f32 {v(60+n)}, {lit(-1.4426950408889634)}, {v(GC+n)}")
        for n in range(7): e(f"v_exp_f32 {v(60+n)}, {v(60+n)}")
        for n in range(7): e(f"v_add_f32 {v(60+n)}, 1.0, {v(60+n)}")
        for n in range(7): e(f"v_rcp_f32 {v(60+n)}, {v(60+n)}")
        for n in range(7): e(f"v_mul_f32 {v(60+n)}, {v(60+n)}, {v(GC+n)}")
        for n in range(7): e(f"v_cvt_pk_bf16_f32 {v(60+n)}, {v(60+n)}, {v(60+n)}")
        if self.o.get("gdot"):
            e("s_mov_b32 s94, 0x05040100\ns_mov_b32 s95, 0x07060302")
            for n in range(0, 6, 2): e(f"v_perm_b32 {v(GC+n)}, {v(60+n+1)}, {v(60+n)}, s94")
            e(f"v_and_b32 {v(GC+6)}, 0xffff, v66")
            for n in range(0, 7, 2):
                for q in range(4):
                    w0 = GW + 4*n + q
                    w1 = GW + 4*(n+1) + q if n < 6 else w0
                    e(f"v_perm_b32 v68, {v(w1)}, {v(w0)}, s94\nv_perm_b32 v69, {v(w1)}, {v(w0)}, s95")
                    for h_, t_ in ((0, 68), (1, 69)):
                        acc = v(GA+2*q+h_)
                        e(f"v_dot2_f32_bf16 {acc}, {v(t_)}, {v(GC+n)}, {acc if n else 0}")
        else:
            for n in range(7): e(f"v_lshlrev_b32 {v(GC+n)}, 16, {v(60+n)}")
            for n in range(7):
                for q in range(4):
                    w = GW + 4*n + q
                    e(f"v_lshlrev_b32 v60, 16, {v(w)}\nv_and_b32 v61, {s(sHI)}, {v(w)}")
                    if n == 0: e(f"v_mul_f32 {v(GA+2*q)}, v60, {v(GC+n)}\nv_mul_f32 {v(GA+2*q+1)}, v61, {v(GC+n)}")
                    else: e(f"v_fmac_f32 {v(GA+2*q)}, v60, {v(GC+n)}\nv_fmac_f32 {v(GA+2*q+1)}, v61, {v(GC+n)}")
        for rot in (4, 8):
            for k in range(8):
                e(f"v_add_f32_dpp {v(GA+k)}, {v(GA+k)}, {v(GA+k)} row_ror:{rot} row_mask:0xf bank_mask:0xf")
        e(f"v_lshlrev_b32 v60, 7, {v(vG)}\nv_and_b32 v61, 3, {v(vLane)}\nv_lshlrev_b32 v61, 5, v61\nv_add_u32 v60, v60, v61")
        e(f"s_lshl_b32 s82, {s(sW)}, 9\ns_add_u32 s82, s82, {L_GS}\nv_add_u32 v60, s82, v60")
        e(f"ds_write_b128 v60, {v(GA,4)}\nds_write_b128 v60, {v(GA+4,4)} offset:16")
        e("s_waitcnt lgkmcnt(0)\ns_barrier")
        e(f"s_cmp_eq_u32 {s(sW)}, {0 if self.o.get('ppmix') else 3}\ns_cbranch_scc0 L_nogemv")
        e(f"v_and_b32 v60, 31, {v(vLane)}\nv_lshlrev_b32 v60, 2, v60\nv_lshrrev_b32 v61, 5, {v(vLane)}\nv_lshlrev_b32 v61, 10, v61\nv_add_u32 v60, v60, v61\nv_add_u32 v60, {L_GS}, v60")
        for p in range(8): e(f"ds_read_b32 {v(GA+p)}, v60 offset:{p*128}")
        e("s_waitcnt lgkmcnt(0)")
        for p in range(1, 8): e(f"v_add_f32 {v(GA)}, {v(GA)}, {v(GA+p)}")
        e(f"v_mov_b32 v61, {v(GA)}\nv_permlane32_swap_b32 {v(GA)}, v61\nv_add_f32 {v(GA)}, {v(GA)}, v61")
        e(f"v_cvt_pk_bf16_f32 v60, {v(GA)}, {v(GA)}\nv_lshlrev_b32 v60, 16, v60")
        e("s_sub_u32 s82, s63, 14\ns_cmp_lt_u32 s82, 14\ns_cselect_b32 s83, 1, 0\ns_sub_u32 s82, s63, 56\ns_cmp_lt_u32 s82, 14\ns_cselect_b32 s83, 1, s83")
        e("s_cmp_eq_u32 s83, 1\ns_cbranch_scc0 L_gemv_noplus")
        e("v_add_f32 v60, 1.0, v60\nv_cvt_pk_bf16_f32 v60, v60, v60\nv_lshlrev_b32 v60, 16, v60")
        e("L_gemv_noplus:")
        e("v_mov_b32_dpp v61, v60 quad_perm:[1,0,3,2] row_mask:0xf bank_mask:0xf")
        e(f"v_cvt_pk_bf16_f32 v62, v60, v61\nv_mov_b32 v63, {s(sN)}")
        e(f"v_and_b32 v60, 31, {v(vLane)}\nv_lshlrev_b32 v60, 2, v60")
        e(f"s_lshl_b32 s82, s63, 7\ns_add_u32 s82, s82, {WS_MODG}")
        e("s_mov_b32 exec_lo, 0x55555555\ns_mov_b32 exec_hi, 0")
        e(f"buffer_store_dwordx2 v[62:63], v60, {srd(SWS)}, s82 offen sc1")
        e("s_mov_b64 exec, -1")
        e("L_nogemv:")
        e.restore(st)

    XB = 16
    PPR = 128
    def XR(self, st): return self.XB + st*8
    AS, AQ = 248, 250
    def ln1(self):
        e = self.e
        AS, AQ = self.AS, self.AQ
        e(f"v_lshrrev_b32 v6, 1, {v(vRho)}\nv_xor_b32 v6, v6, {v(vG)}\nv_xor_b32 v7, 4, v6\nv_lshlrev_b32 v6, 4, v6\nv_lshlrev_b32 v7, 4, v7")
        e(f"v_lshlrev_b32 v9, 7, {v(vRho)}\nv_add_u32 v6, v6, v9\nv_add_u32 v7, v7, v9")
        e(f"s_lshl_b32 s82, {s(sW)}, 11\ns_add_u32 s82, s82, {L_X}")
        e("v_add_u32 v6, s82, v6\nv_add_u32 v7, s82, v7")
        tk = {}
        def rd(st):
            e.wait_vm(self.t_xcb[st >> 1])
            tk[st] = e.ds(f"ds_read_b128 {v(self.XR(st)+4,4)}, {v(6+(st&1))} offset:{(st>>1)*8192}")
        for st in range(4): rd(st)
        for st in range(14):
            if st + 4 < 14: rd(st + 4)
            e.wait_lg(tk[st])
            X = self.XR(st)
            for q in range(4): e(f"v_lshlrev_b32 {v(X+q)}, 16, {v(X+4+q)}")
            for q in range(4): e(f"v_and_b32 {v(X+4+q)}, {s(sHI)}, {v(X+4+q)}")
            e.tick()
            for q in range(4):
                if st == 0 and q == 0:
                    e(f"v_pk_add_f32 {v(AS,2)}, {v(X,2)}, {v(X+2,2)}\nv_pk_mul_f32 {v(AQ,2)}, {v(X,2)}, {v(X,2)}")
                else:
                    if not (st == 0 and q == 1): e(f"v_pk_add_f32 {v(AS,2)}, {v(AS,2)}, {v(X+2*q,2)}")
                    e(f"v_pk_fma_f32 {v(AQ,2)}, {v(X+2*q,2)}, {v(X+2*q,2)}, {v(AQ,2)}")

    def ln1_finish(self):
        e = self.e
        AS, AQ = self.AS, self.AQ
        e(f"v_add_f32 {v(AS)}, {v(AS)}, {v(AS+1)}\nv_add_f32 {v(AQ)}, {v(AQ)}, {v(AQ+1)}")
        self.allreduce_g2(AS, AQ, 6, 7, "add")
        self.stats_finish(AS, AQ, 448, 252, "nmr")
        for st in range(14):
            X = self.XR(st)
            for q in range(4):
                e(f"v_pk_fma_f32 {v(X+2*q,2)}, {v(X+2*q,2)}, v[252:253], v[252:253] op_sel:[0,0,1] op_sel_hi:[1,0,1]")

    def mod_wait1(self):
        e = self.e
        st = e.snap()
        e(f"s_cmp_eq_u32 {s(sW)}, 3\ns_cbranch_scc0 L_mod1_skip")
        R, AD = 240, 128
        e(f"v_add_u32 v7, 192, {v(vLane)}\nv_min_u32 v7, 223, v7\nv_lshlrev_b32 v8, 4, v7")
        for i in range(4):
            t, u, x, y = 132, 133, 134, 135
            if i < 3: e(f"v_add_u32 {v(t)}, {64*i}, {v(vLane)}")
            else: e(f"v_mov_b32 {v(t)}, v7")
            e(f"v_cmp_gt_u32 vcc, 112, {v(t)}\nv_subrev_u32 {v(u)}, 112, {v(t)}\nv_cndmask_b32 {v(u)}, {v(u)}, {v(t)}, vcc")
            e(f"v_cndmask_b32 {v(y)}, 0, 8, vcc")
            e(f"v_and_b32 {v(x)}, 1, {v(u)}\nv_lshlrev_b32 {v(x)}, 2, {v(x)}\nv_add_u32 {v(y)}, {v(y)}, {v(x)}\nv_lshlrev_b32 {v(y)}, 4, {v(y)}")
            e(f"v_bfe_u32 {v(x)}, {v(u)}, 1, 2\nv_lshlrev_b32 {v(x)}, 8, {v(x)}\nv_add_u32 {v(y)}, {v(y)}, {v(x)}")
            e(f"v_bfe_u32 {v(x)}, {v(u)}, 3, 2\nv_lshlrev_b32 {v(x)}, 2, {v(x)}\nv_add_u32 {v(y)}, {v(y)}, {v(x)}")
            e(f"v_lshrrev_b32 {v(x)}, 5, {v(u)}\nv_lshlrev_b32 {v(x)}, 10, {v(x)}\nv_add_u32 {v(y)}, {v(y)}, {v(x)}\nv_add_u32 {v(AD+i)}, {L_M}, {v(y)}")
        self.poll([(R, 4, vL16, WS_MODG, 0), (R+4, 4, vL16, WS_MODG, 1024), (R+8, 4, vL16, WS_MODG, 2048), (R+12, 4, 8, WS_MODG, 0)],
                  [(R+1, None), (R+3, None), (R+5, None), (R+7, None), (R+9, None), (R+11, None), (R+13, None), (R+15, None)], stem="mod1")
        for i in range(4):
            r = R + 4*i
            e(f"v_and_b32 {v(r+1)}, {s(sHI)}, {v(r)}\nv_and_b32 {v(r+3)}, {s(sHI)}, {v(r+2)}\nv_lshlrev_b32 {v(r)}, 16, {v(r)}\nv_lshlrev_b32 {v(r+2)}, 16, {v(r+2)}")
            for k in range(4): e(f"ds_write_b32 {v(AD+i)}, {v(r+k)} offset:{16*k}")
        e("s_waitcnt lgkmcnt(0)")
        e("L_mod1_skip:")
        e.restore(st)

    def modulate(self):
        e = self.e
        MS, T = 128, 144
        e(f"v_add_u32 v7, {L_M}, {v(vL16)}")
        tk = [e.ds(f"ds_read_b128 {v(MS+4*k,4)}, v7 offset:{k*1024}") for k in range(4)]
        e(f"s_lshl_b32 s82, {s(sW)}, 11\ns_add_u32 s82, s82, {L_X}\nv_add_u32 v6, s82, {v(vL16)}")
        perm = [0, 2, 4, 6, 1, 3, 5, 7]
        for st in range(14):
            if st % 4 == 0: e.wait_lg(tk[st >> 2])
            X, R = self.XR(st), MS + st
            t = T + 8*(st & 1)
            for p in range(8): e(f"v_mov_b32_dpp {v(t+p)}, {v(R)} row_newbcast:{8+perm[p]} row_mask:0xf bank_mask:0xf")
            for p in range(8): e(f"v_fmac_f32_dpp {v(t+p)}, {v(R)}, {v(X+p)} row_newbcast:{perm[p]} row_mask:0xf bank_mask:0xf")
            e.tick()
            for q in range(4): e(f"v_cvt_pk_bf16_f32 {v(X+q)}, {v(t+2*q)}, {v(t+2*q+1)}")
            e(f"ds_write_b128 v6, {v(X,4)} offset:{(st>>1)*8192 + (st&1)*1024}")

    HB = 16
    def HR(self, st, tau): return self.HB + (st*2 + tau)*4
    def h_read(self):
        e = self.e
        e(f"s_lshr_b32 s82, {s(sW)}, 1\ns_lshl_b32 s82, s82, 12\ns_add_u32 s82, s82, {L_X}\nv_add_u32 v7, s82, {v(vL16)}")
        for st in range(14):
            for tau in range(2):
                e(f"ds_read_b128 {v(self.HR(st,tau),4)}, v7 offset:{(st>>1)*8192 + tau*2048 + (st&1)*1024}")

    ACC = {"k": 128, "v": 144, "q": 160}
    RING = 176
    def qkv_gemm(self, which, lbase, tick_every=0, hook=None):
        e = self.e
        base = self.ACC[which]
        acc = [[base, base+4], [base+8, base+12]]
        if which == "k":
            e(f"v_lshrrev_b32 v8, 2, {v(vRho)}\nv_lshlrev_b32 v8, 1, v8\nv_lshlrev_b32 v6, 3, {v(vG)}\nv_add_u32 v6, v6, v8\nv_mul_u32_u24 v6, 112, v6")
            e(f"v_and_b32 v8, 3, {v(vRho)}\nv_lshlrev_b32 v8, 3, v8\nv_add_u32 v6, v6, v8")
            e(f"s_and_b32 s82, {s(sW)}, 1\ns_mul_i32 s82, s82, 56\nv_add_u32 v6, s82, v6")
        e(f"v_add_u32 v7, {lbase}, v6")
        def reads(st):
            return [f"ds_read_b64_tr_b16 {v(self.RING + (st % 4)*8 + 4*td + 2*par, 2)}, v7 offset:{st*3584 + par*112 + 32*td}"
                    for td in range(2) for par in range(2)]
        def mfmas(st):
            out = []
            for tau in range(2):
                for td in range(2):
                    w, h = v(self.RING + (st % 4)*8 + 4*td, 4), v(self.HR(st, tau), 4)
                    A, B = (h, w) if which == "v" else (w, h)
                    out.append(f"{MF} {v(acc[tau][td],4)}, {A}, {B}, {v(acc[tau][td],4) if st else 0}")
            return out
        def pre(st):
            e.tick()
            if hook: hook(st)
        self.gemm_loop(14, reads, mfmas, depth=3, pre=pre)
        return acc

    def KF(self, tau): return 208 + 4*tau
    def VF(self, td): return 216 + 4*td
    def QF(self, tau): return 224 + 4*tau
    def kvq_setup(self):
        e = self.e
        e(f"s_and_b32 s82, {s(sW)}, 1\ns_lshl_b32 s83, {s(sJ)}, 1\ns_add_u32 s58, s83, s82")
        e(f"s_lshr_b32 s82, {s(sW)}, 1\ns_lshl_b32 s83, {s(sCl)}, 1\ns_add_u32 s59, s83, s82")
        e(f"s_lshl_b32 s82, s58, 6\ns_add_u32 s82, s82, s59\ns_lshl_b32 s60, s82, 12\ns_add_u32 s60, s60, {WS_KV}")
        e(f"s_lshl_b32 s61, s82, 2\ns_add_u32 s61, s61, {WS_F1K}")
        e(f"v_cmp_gt_u32 vcc, 3, {v(vG)}\nv_cndmask_b32 v13, 0, -1, vcc")
        e(f"v_cmp_gt_u32 vcc, 12, {v(vRho)}\nv_cndmask_b32 v14, 0, -1, vcc")
        e(f"v_cmp_eq_u32 vcc, 12, {v(vRho)}\nv_mov_b32 v15, 0x3f803f80\nv_cndmask_b32 v15, 0, v15, vcc")

    def k_epilogue(self, acc):
        e = self.e
        for tau in range(2):
            for td in range(2):
                A = acc[tau][td]
                e(f"v_cvt_pk_bf16_f32 {v(self.KF(tau)+2*td)}, {v(A)}, {v(A+1)}\nv_cvt_pk_bf16_f32 {v(self.KF(tau)+2*td+1)}, {v(A+2)}, {v(A+3)}")
            e(f"v_and_b32 {v(self.KF(tau)+2)}, v13, {v(self.KF(tau)+2)}\nv_and_b32 {v(self.KF(tau)+3)}, v13, {v(self.KF(tau)+3)}")
            e(f"buffer_store_dwordx4 {v(self.KF(tau),4)}, {v(vL16)}, {srd(SWS)}, s60 offen offset:{tau*1024} sc1")

    def v_epilogue(self, acc):
        e = self.e
        for td in range(2):
            for tau in range(2):
                A = acc[tau][td]
                e(f"v_cvt_pk_bf16_f32 {v(self.VF(td)+2*tau)}, {v(A)}, {v(A+1)}\nv_cvt_pk_bf16_f32 {v(self.VF(td)+2*tau+1)}, {v(A+2)}, {v(A+3)}")
            if td == 1:
                for k in range(4): e(f"v_and_or_b32 {v(self.VF(1)+k)}, {v(self.VF(1)+k)}, v14, v15")
            e(f"buffer_store_dwordx4 {v(self.VF(td),4)}, {v(vL16)}, {srd(SWS)}, s60 offen offset:{(2+td)*1024} sc1")

    def q_epilogue(self, acc):
        e = self.e
        e(f"s_mov_b32 s82, {lit(QSCALE)}")
        for tau in range(2):
            for td in range(2):
                A = acc[tau][td]
                for k in range(4): e(f"v_mul_f32 {v(A+k)}, s82, {v(A+k)}")
                e(f"v_cvt_pk_bf16_f32 {v(self.QF(tau)+2*td)}, {v(A)}, {v(A+1)}\nv_cvt_pk_bf16_f32 {v(self.QF(tau)+2*td+1)}, {v(A+2)}, {v(A+3)}")
            e(f"v_and_b32 {v(self.QF(tau)+2)}, v13, {v(self.QF(tau)+2)}\nv_and_b32 {v(self.QF(tau)+3)}, v13, {v(self.QF(tau)+3)}")

    SB, OB = 16, 160
    def SR(self, i, tq): return self.SB + (i*2 + tq)*8
    def OR_(self, td, tq): return self.OB + (td*2 + tq)*4
    def att_bias(self):
        e = self.e
        e(f"v_lshrrev_b32 v5, 2, {v(vRho)}\nv_sub_u32 v5, v5, {v(vG)}\nv_lshlrev_b32 v5, 3, v5\nv_and_b32 v6, 3, {v(vRho)}\nv_add_u32 v5, v5, v6")
        e(f"v_mov_b32 v6, {lit(-1e30)}\nv_mov_b32 v7, 0")
        for tq in range(2):
            for tk in range(2):
                for r in range(4):
                    e(f"v_cmp_le_i32 {s(82+2*r,2)}, {4*(tk-tq)+r}, v5")
                for r in range(4):
                    e(f"v_cndmask_b32 {v(self.SR(8,tq)+4*tk+r)}, v6, v7, {s(82+2*r,2)}")
                    e(f"v_cndmask_b32 {v(self.SR(0,tq)+4*tk+r)}, v7, v6, {s(82+2*r,2)}")
        if self.o.get("smax") in (1, "1"):
            for i in range(8):
                e(f"s_add_u32 s82, s59, {i}\ns_cmp_ge_u32 s82, 8\ns_cselect_b32 s83, 0, {lit(-1e30)}")
                for r in range(16):
                    if i == 0: e(f"v_min_f32 {v(self.SR(0,0)+r)}, s83, {v(self.SR(0,0)+r)}")
                    else: e(f"v_mov_b32 {v(self.SR(i,0)+r)}, s83")

    FWR, M2R = 232, (244, 248)
    def late_loads(self):
        e = self.e
        e(f"s_lshl_b32 s82, {s(sW)}, 6\nv_add_u32 v10, s82, {v(vLane)}\nv_min_u32 v10, 223, v10\nv_lshlrev_b32 v9, 4, v10")
        e(f"s_mov_b32 s92, {WS_FW}\ns_mov_b32 s93, {WS_MODG + 3584}")
        for k in range(3): e(f"buffer_load_dwordx4 {v(self.FWR+4*k,4)}, {v(vL16)}, {srd(SWS)}, s92 offen offset:{k*1024} sc1")
        e(f"buffer_load_dwordx4 {v(self.M2R[0],4)}, v9, {srd(SWS)}, s93 offen sc1")
        e(f"buffer_load_dwordx4 {v(self.M2R[1],4)}, v9, {srd(SWS)}, s93 offen offset:3584 sc1")
        return e.tvm()

    def late_check(self, t):
        e = self.e
        e.wait_vm(t)
        chk = [self.FWR + k for k in range(12)] + [self.M2R[0]+1, self.M2R[0]+3, self.M2R[1]+1, self.M2R[1]+3]
        Lok = e.label("lateok")
        self.tags_differ(chk)
        if self.o.get("forcelate"): e("s_cmp_eq_u32 s2, 9999")
        else: e(f"s_cmp_eq_u64 vcc, 0")
        e(f"s_cbranch_scc1 {Lok}")
        st = e.snap()
        self.poll([(self.FWR, 4, vL16, WS_FW, 0), (self.FWR+4, 4, vL16, "s92", 1024), (self.FWR+8, 4, vL16, "s92", 2048),
                   (self.M2R[0], 4, 9, WS_MODG + 3584, 0), (self.M2R[1], 4, 9, "s93", 3584)], [(c, None) for c in chk], stem="late")
        e.restore(st)
        e(f"{Lok}:")
        A, B = self.M2R
        e(f"v_lshlrev_b32 v10, 3, v10\nv_add_u32 v10, {L_M}, v10")
        e(f"v_mov_b32 {v(A+1)}, {v(A+2)}\nv_mov_b32 {v(B+1)}, {v(B+2)}")
        e(f"ds_write_b64 v10, {v(A,2)}\nds_write_b64 v10, {v(B,2)} offset:1792")

    def att_load_groups(self, abase, off, key):
        out = []
        for i in range(8):
            for t in range(2):
                out.append(((key, i*2+t), f"buffer_load_dwordx4 {a(abase + (i*2+t)*4, 4)}, {v(vL16)}, {srd(SWS)}, {s(84+i)} offen offset:{off + t*1024} sc1"))
        return out

    def att_offsets(self):
        e = self.e
        for i in range(8):
            e(f"s_add_u32 s82, s59, {i}\ns_sub_u32 s83, s60, {(8-i)*4096}\ns_cmp_ge_u32 s82, 8\ns_cselect_b32 {s(84+i)}, s83, {OOB}")

    def att_scores(self):
        e = self.e
        smax = self.o.get("smax")
        if smax == "2":
            Ls, Lj = e.label("attslow"), e.label("attjoin")
            e(f"s_cmp_ge_u32 s59, 8\ns_cbranch_scc0 {Ls}")
            st, q, t = e.snap(), list(e.bgq), dict(e.bgt)
            self.att_scores_path(True, False)
            e(f"s_branch {Lj}")
            fast = e.snap()
            e.restore(st); e.bgq, e.bgt = q, t
            e(f"{Ls}:")
            self.att_scores_path(False, False)
            self.att_max_chains()
            assert e.vm_issued == fast[0]
            e.vm_done = min(e.vm_done, fast[1])
            e(f"{Lj}:")
        else:
            self.att_scores_path(bool(smax), bool(smax))

    def att_max_chains(self):
        e = self.e
        M = [176, 178]
        chains = []
        for tq in range(2):
            regs = [self.SR(i, tq) + r for i in [8] + list(range(8)) for r in range(8)]
            c = [f"v_max3_f32 {v(M[tq])}, {v(regs[0])}, {v(regs[1])}, {v(regs[2])}", f"v_max_f32 {v(M[tq])}, {v(M[tq])}, {v(regs[3])}"]
            c += [f"v_max3_f32 {v(M[tq])}, {v(M[tq])}, {v(regs[k])}, {v(regs[k+1])}" for k in range(4, 72, 2)]
            chains.append(c)
        k = 0
        for x, y in zip(*chains):
            e(x); e(y); k += 1

    def att_scores_path(self, runmax, cinit):
        e = self.e
        M = [176, 178]
        def maxops(i, first):
            out = []
            for k in range(4):
                for tq in range(2):
                    B = self.SR(i, tq)
                    if first and k == 0: out.append(f"v_max3_f32 {v(M[tq])}, {v(B)}, {v(B+1)}, {v(B+2)}")
                    elif first and k == 3: out.append(f"v_max_f32 {v(M[tq])}, {v(M[tq])}, {v(B+7)}")
                    elif first: out.append(f"v_max3_f32 {v(M[tq])}, {v(M[tq])}, {v(B+2*k+1)}, {v(B+2*k+2)}")
                    else: out.append(f"v_max3_f32 {v(M[tq])}, {v(M[tq])}, {v(B+2*k)}, {v(B+2*k+1)}")
            return out
        prev = None
        for i in [8] + list(range(8)):
            for t in range(2):
                if i < 8: e.wait_vm(e.bgt["k", i*2+t])
                A = v(self.KF(t), 4) if i == 8 else a((i*2+t)*4, 4)
                for tq in range(2):
                    D = v(self.SR(i, tq) + 4*t, 4)
                    e(f"{MF} {D}, {A}, {v(self.QF(tq),4)}, {D if (cinit or i in (0, 8)) else 0}")
                if i < 8: e.tick()
            if runmax:
                if prev is not None:
                    for x in maxops(prev, prev == 8): e(x)
                prev = i
        if runmax:
            for x in maxops(prev, False): e(x)
            return
        Ln = e.label("attnofix")
        e(f"s_cmp_ge_u32 s59, 8\ns_cbranch_scc1 {Ln}")
        e(f"v_mov_b32 v6, {lit(-1e30)}")
        for i in range(8):
            e(f"s_add_u32 s82, s59, {i}\ns_cmp_ge_u32 s82, 8\ns_cbranch_scc1 {Ln}")
            for r in range(16): e(f"v_mov_b32 {v(self.SR(i,0)+r)}, v6")
        e(f"{Ln}:")

    def att_softmax_pv(self, ntick):
        e = self.e
        M = [176, 178]
        if not self.o.get("smax"): self.att_max_chains()
        self.allreduce_g2(M[0], M[1], 5, 6, "max")
        units = [(i, tq) for i in [8] + list(range(8)) for tq in range(2)]
        first = set()
        def pv(u):
            i, tq = u
            out = []
            for td in range(2):
                A = v(self.VF(td), 4) if i == 8 else a(64 + (i*2+td)*4, 4)
                O = v(self.OR_(td, tq), 4)
                c = O if (td, tq) in first else "0"
                first.add((td, tq))
                out.append((None if i == 8 else ("v", i*2+td), f"{MF} {O}, {A}, {v(self.SR(i,tq),4)}, {c}"))
            return out
        def emit_pv(item):
            key, txt = item
            if key is not None: e.wait_bg(key)
            e(txt)
        prev = None
        for n, u in enumerate(units):
            i, tq = u
            B = self.SR(i, tq)
            for q in range(4):
                e(f"v_pk_add_f32 {v(B+2*q,2)}, {v(B+2*q,2)}, {v(M[tq],2)} op_sel_hi:[1,0] neg_lo:[0,1] neg_hi:[0,1]")
            pm = pv(prev) if prev else []
            for k in range(8):
                e(f"v_exp_f32 {v(B+k)}, {v(B+k)}")
                if k in (1, 3) and pm: emit_pv(pm.pop(0))
                if k in (5, 7) and ntick > 0 and (k == 5 or n % 2 == 0):
                    e.tick(); ntick -= 1
            for q in range(4):
                e(f"v_cvt_pk_bf16_f32 {v(B+q)}, {v(B+2*q)}, {v(B+2*q+1)}")
            prev = u
        for it in pv(prev): emit_pv(it)

    def att_epilogue(self):
        e = self.e
        e(f"s_lshr_b32 s82, {s(sW)}, 1\ns_lshl_b32 s82, s82, 1\ns_lshl_b32 s83, {s(sCl)}, 2\ns_add_u32 s82, s82, s83\ns_lshl_b32 s82, s82, 4\ns_add_u32 s82, s82, s58\ns_lshl_b32 s82, s82, 10\ns_add_u32 s64, s82, {WS_O}\ns_add_u32 s65, s64, 16384")
        e(f"s_lshl_b32 s82, {s(sCl)}, 7\ns_add_u32 s62, s82, {WS_F2}\ns_lshl_b32 s83, {s(sJ)}, 2\ns_add_u32 s66, s62, s83")
        L = [8, 10]
        for tq in range(2): e(f"v_mov_b32 {v(L[tq])}, {v(self.OR_(1,tq))}\nv_mov_b32 {v(L[tq]+1)}, {v(self.OR_(1,tq))}")
        for tq in range(2): e(f"v_permlane32_swap_b32 {v(L[tq])}, {v(L[tq]+1)}")
        for tq in range(2): e(f"v_mov_b32 {v(L[tq])}, {v(L[tq]+1)}")
        for tq in range(2): e(f"v_permlane16_swap_b32 {v(L[tq])}, {v(L[tq]+1)}")
        for tq in range(2): e(f"v_rcp_f32 {v(L[tq])}, {v(L[tq]+1)}")
        for tq in range(2):
            P = 180 + 4*tq
            for td in range(2):
                O = self.OR_(td, tq)
                for q in range(2): e(f"v_pk_mul_f32 {v(O+2*q,2)}, {v(O+2*q,2)}, {v(L[tq],2)} op_sel_hi:[1,0]")
                e(f"v_cvt_pk_bf16_f32 {v(P+2*td)}, {v(O)}, {v(O+1)}\nv_cvt_pk_bf16_f32 {v(P+2*td+1)}, {v(O+2)}, {v(O+3)}")
            e(f"buffer_store_dwordx4 {v(P,4)}, {v(vL16)}, {srd(SWS)}, {s(64+tq)} offen sc1")
        self.publish("s66", pre=int(self.o.get("o_pre", 12)), post=int(self.o.get("o_post", 0)), name="o")

    def wo_bg(self):
        e = self.e
        e(f"s_lshl_b32 s75, {s(sJ)}, 16\ns_lshl_b32 s76, {s(sW)}, 14\ns_add_u32 s75, s75, s76\ns_add_u32 s75, s75, {WS_WO}")
        for n in range(16):
            e.bg_add("wo", f"s_add_u32 s81, s75, {n*1024}\ns_add_u32 m0, s76, {L_WO + n*1024}\nbuffer_load_dwordx4 {v(vL16)}, {srd(SWS)}, s81 offen sc1 lds")

    WZ2, WZ1 = 128, 0
    def win_bg(self, part, sb):
        e = self.e
        base = self.WZ2 if part else self.WZ1
        for tl in range(2):
            e(f"s_lshl_b32 s82, {s(sJ)}, 1\ns_add_u32 s82, s82, {part}\ns_lshl_b32 s82, s82, 3\ns_lshl_b32 s83, {s(sW)}, 1\ns_add_u32 s83, s83, {tl}\ns_add_u32 s82, s82, s83")
            e(f"s_mul_i32 s82, s82, {14*1024}\ns_add_u32 s82, s82, {WS_WIN}\ns_cmp_lt_u32 s83, 7\ns_cselect_b32 {s(sb+tl)}, s82, {OOB}")
        for st in range(14):
            for tl in range(2):
                e.bg_add(("win", part), f"s_add_u32 s81, {s(sb+tl)}, {(st >> 2)*4096}\nbuffer_load_dwordx4 {a(base + (tl*14+st)*4, 4)}, {v(vL16)}, {srd(SWS)}, s81 offen offset:{(st & 3)*1024} sc1")

    X1 = 248
    def row_offset(self, dst):
        e = self.e
        e(f"v_lshrrev_b32 v6, 2, {v(vRho)}\nv_lshlrev_b32 v6, 3, v6\nv_and_b32 v7, 3, {v(vRho)}\nv_add_u32 v6, v6, v7")
        e(f"s_lshr_b32 s82, {s(sW)}, 1\ns_lshl_b32 s82, s82, 5\ns_and_b32 s83, {s(sW)}, 1\ns_lshl_b32 s83, s83, 2\ns_add_u32 s82, s82, s83\ns_lshl_b32 s83, {s(sCl)}, 6\ns_add_u32 s82, s82, s83")
        e(f"v_add_u32 v6, s82, v6\nv_mul_u32_u24 v6, 896, v6\nv_lshlrev_b32 v7, 4, {v(vG)}\nv_add_u32 {v(dst)}, v6, v7\ns_mul_i32 s67, {s(sJ)}, 112")

    def xslice_bg(self):
        e = self.e
        self.row_offset(247)
        e.bg_add("xs", f"buffer_load_dwordx4 v[188:191], v247, {srd(SX)}, s67 offen")
        e.bg_add("xs", f"buffer_load_dwordx4 v[192:195], v247, {srd(SX)}, s67 offen offset:64")

    def p3(self, held):
        e = self.e
        OF, ACC, RING = 16, 80, 96
        e(f"s_lshl_b32 s84, {s(sCl)}, 2\ns_add_u32 s84, s84, {s(sW)}\ns_lshl_b32 s84, s84, 14\ns_add_u32 s84, s84, {WS_O}")
        for k in range(1, 4): e(f"s_add_u32 {s(84+k)}, s84, {4096*k}")
        self.spoll("s62", "f2", fast=True)
        self.stamp("f2poll")
        to = []
        for h in range(16):
            to.append(e.vm(f"buffer_load_dwordx4 {v(OF+4*h,4)}, {v(vL16)}, {srd(SWS)}, {s(84 + (h >> 2))} offen offset:{(h & 3)*1024} sc1"))
        e(f"v_add_u32 v7, {L_WO}, {v(vL16)}")
        GA, M2 = 144, 152
        e(f"v_lshlrev_b32 v8, 4, {v(vG)}\ns_mul_i32 s82, {s(sJ)}, 112\ns_add_u32 s82, s82, {L_M}\nv_add_u32 v8, s82, v8")
        e(f"ds_read_b128 {v(GA,4)}, v8\nds_read_b128 {v(GA+4,4)}, v8 offset:64\nds_read_b128 {v(M2,4)}, v8 offset:1792\nds_read_b128 {v(M2+4,4)}, v8 offset:{1792+64}")
        e(f"v_cmp_gt_u32 vcc, 3, {v(vG)}\nv_cndmask_b32 v9, 0, -1, vcc")
        early = self.o.get("p3early")
        XU, GU, MU = (160, 196, 212) if early else (16, 32, 48)
        def unpack_xg():
            for k in range(4): e(f"v_and_b32 {v(192+k)}, v9, {v(192+k)}")
            for k in range(8):
                e(f"v_lshlrev_b32 {v(XU+2*k)}, 16, {v(188+k)}\nv_and_b32 {v(XU+2*k+1)}, {s(sHI)}, {v(188+k)}")
                e(f"v_lshlrev_b32 {v(GU+2*k)}, 16, {v(GA+k)}\nv_and_b32 {v(GU+2*k+1)}, {s(sHI)}, {v(GA+k)}")
        def unpack_m():
            for k in range(8): e(f"v_lshlrev_b32 {v(MU+2*k)}, 16, {v(M2+k)}\nv_and_b32 {v(MU+2*k+1)}, {s(sHI)}, {v(M2+k)}")
        if early:
            e.wait_lg(e.tlg())
            unpack_xg(); unpack_m()
        self.gemm_loop(16, lambda h: [f"ds_read_b128 {v(RING + ((h % 3)*4 + ft)*4, 4)}, v7 offset:{(h*4+ft)*1024}" for ft in range(4)],
                       lambda h: [f"{MF} {v(ACC+4*ft,4)}, {v(RING + ((h % 3)*4 + ft)*4, 4)}, {v(OF+4*h,4)}, {v(ACC+4*ft,4) if h else 0}" for ft in range(4)],
                       depth=2, pre=lambda h: e.wait_vm(to[h]))
        self.stamp("p3gemm")
        if not early: unpack_xg()
        for k in range(8):
            e(f"v_pk_fma_f32 {v(XU+2*k,2)}, {v(GU+2*k,2)}, {v(ACC+2*k,2)}, {v(XU+2*k,2)}")
        for k in range(8): e(f"v_cvt_pk_bf16_f32 {v(self.X1+k)}, {v(XU+2*k)}, {v(XU+2*k+1)}")
        for k in range(8):
            e(f"v_lshlrev_b32 {v(XU+2*k)}, 16, {v(self.X1+k)}\nv_and_b32 {v(XU+2*k+1)}, {s(sHI)}, {v(self.X1+k)}")
        if not early: unpack_m()
        YP = 64
        for k in range(8):
            e(f"v_pk_mul_f32 {v(MU+2*k,2)}, {v(MU+2*k,2)}, {v(XU+2*k,2)}")
        for k in range(8): e(f"v_cvt_pk_bf16_f32 {v(YP+k)}, {v(MU+2*k)}, {v(MU+2*k+1)}")
        e(f"s_lshl_b32 s82, {s(sCl)}, 2\ns_add_u32 s82, s82, {s(sW)}\ns_mul_i32 s82, s82, 14336\ns_mul_i32 s83, {s(sJ)}, 1792\ns_add_u32 s82, s82, s83\ns_add_u32 s82, s82, {WS_Y}")
        e(f"buffer_store_dwordx4 {v(YP,4)}, {v(vL16)}, {srd(SWS)}, s82 offen sc1")
        e("s_mov_b32 exec_hi, 0x0000ffff")
        e(f"buffer_store_dwordx4 {v(YP+4,4)}, {v(vL16)}, {srd(SWS)}, s82 offen offset:1024 sc1")
        e("s_mov_b32 exec_hi, -1")
        SS, QQ = 72, 74
        e(f"v_pk_add_f32 {v(SS,2)}, {v(XU,2)}, {v(XU+2,2)}\nv_pk_mul_f32 {v(QQ,2)}, {v(XU,2)}, {v(XU,2)}")
        for k in range(2, 8): e(f"v_pk_add_f32 {v(SS,2)}, {v(SS,2)}, {v(XU+2*k,2)}")
        for k in range(1, 8): e(f"v_pk_fma_f32 {v(QQ,2)}, {v(XU+2*k,2)}, {v(XU+2*k,2)}, {v(QQ,2)}")
        e(f"v_add_f32 {v(SS)}, {v(SS)}, {v(SS+1)}\nv_add_f32 {v(SS+1)}, {v(QQ)}, {v(QQ+1)}")
        self.allreduce_g2(SS, SS+1, 5, 6, "add")
        e(f"s_lshl_b32 s82, {s(sCl)}, 3\ns_add_u32 s82, s82, {s(sJ)}\ns_lshl_b32 s82, s82, 9\ns_lshl_b32 s83, {s(sW)}, 7\ns_add_u32 s82, s82, s83\ns_add_u32 s82, s82, {WS_ST1}")
        e(f"v_lshlrev_b32 v7, 3, {v(vRho)}")
        e("s_mov_b32 exec_lo, 0xffff\ns_mov_b32 exec_hi, 0")
        e(f"buffer_store_dwordx2 {v(SS,2)}, v7, {srd(SWS)}, s82 offen sc1")
        e("s_mov_b64 exec, -1")
        e(f"s_lshl_b32 s82, {s(sCl)}, 7\ns_add_u32 s62, s82, {WS_F3}\ns_lshl_b32 s83, {s(sJ)}, 2\ns_add_u32 s66, s62, s83")
        e.bgq = held
        self.publish("s66", pre=int(self.o.get("y_pre", 16)), post=int(self.o.get("y_post", 0)), name="y")

    A2, A1, YR = 16, 48, 80
    UVD, UU, VV, MSR = 128, 144, 160, 176
    ST1R, ST2R, Z1P = 188, 196, 232
    def reduce4(self, r0, r1, r2, r3):
        e = self.e
        e(f"v_permlane32_swap_b32 {v(r0)}, {v(r2)}\nv_permlane32_swap_b32 {v(r1)}, {v(r3)}")
        e(f"v_add_f32 {v(r0)}, {v(r0)}, {v(r2)}\nv_add_f32 {v(r1)}, {v(r1)}, {v(r3)}")
        e(f"v_permlane16_swap_b32 {v(r0)}, {v(r1)}\nv_add_f32 {v(r0)}, {v(r0)}, {v(r1)}")

    def stats_finish(self, S_, Q_, n, out, kind):
        e = self.e
        e(f"v_mul_f32 {v(S_)}, {lit(1/n)}, {v(S_)}\nv_mul_f32 {v(Q_)}, {lit(1/n)}, {v(Q_)}")
        e(f"v_fma_f32 {v(Q_)}, -{v(S_)}, {v(S_)}, {v(Q_)}\nv_max_f32 {v(Q_)}, 0, {v(Q_)}\nv_add_f32 {v(Q_)}, {lit(1e-5)}, {v(Q_)}")
        e(f"v_rsq_f32 {v(out)}, {v(Q_)}")
        if kind == "mean": e(f"v_mov_b32 {v(out+1)}, {v(S_)}")
        else: e(f"v_mul_f32_e64 {v(out+1)}, -{v(S_)}, {v(out)}")

    def uv_mfmas(self, part):
        e = self.e
        base, k0 = (self.WZ2, 0) if part else (self.WZ1, 2)
        e(f"v_and_b32 v8, 1, {v(vRho)}\nv_mul_u32_u24 v8, 896, v8\nv_lshlrev_b32 v9, 4, {v(vG)}\nv_sub_u32 v8, v9, v8\nv_add_u32 v8, {L_M + 1792}, v8")
        e.wait_bg(("win", part))
        self.gemm_loop(14, lambda st: [f"ds_read_b128 {v(self.MSR + (st % 3)*4, 4)}, v8 offset:{st*64}"],
                       lambda st: [f"{MF} {v(self.UVD + 4*(k0+tl), 4)}, {a(base + (tl*14+st)*4, 4)}, {v(self.MSR + (st % 3)*4, 4)}, {v(self.UVD + 4*(k0+tl), 4) if st else 0}" for tl in range(2)],
                       depth=2)

    def uv_extract(self, part):
        e = self.e
        k0 = 0 if part else 2
        for k in range(k0, k0+2):
            for r in range(4):
                e(f"v_mov_b32_dpp {v(self.UU+4*k+r)}, {v(self.UVD+4*k+r)} quad_perm:[0,0,2,2] row_mask:0xf bank_mask:0xf")
                e(f"v_mov_b32_dpp {v(self.VV+4*k+r)}, {v(self.UVD+4*k+r)} quad_perm:[1,1,3,3] row_mask:0xf bank_mask:0xf")

    def p4_head(self):
        e = self.e
        e(f"s_lshl_b32 s84, {s(sCl)}, 2\ns_add_u32 s84, s84, {s(sW)}\ns_mul_i32 s84, s84, 14336\ns_add_u32 s84, s84, {WS_Y}")
        for k in range(1, 4): e(f"s_add_u32 {s(84+k)}, s84, {4096*k}")
        e(f"s_mul_i32 s88, {s(sW)}, 14336\ns_add_u32 s88, s88, {L_Y}")
        e(f"v_lshlrev_b32 v7, 10, {v(vG)}\nv_lshlrev_b32 v8, 3, {v(vRho)}\nv_add_u32 v7, v7, v8")
        e(f"s_lshl_b32 s89, {s(sCl)}, 12\ns_lshl_b32 s90, {s(sW)}, 7\ns_add_u32 s89, s89, s90\ns_add_u32 s89, s89, {WS_ST1}")
        self.spoll("s62", "f3", fast=True)
        self.stamp("f3poll")
        e(f"buffer_load_dwordx2 v[204:205], v7, {srd(SWS)}, s89 offen sc1")
        t_s = e.vm(f"buffer_load_dwordx2 v[206:207], v7, {srd(SWS)}, s89 offen offset:512 sc1")
        for n in range(14):
            if n % 4 == 0: e(f"s_add_u32 m0, s88, {n*1024}")
            e(f"buffer_load_dwordx4 {v(vL16)}, {srd(SWS)}, {s(84 + (n >> 2))} offen offset:{(n & 3)*1024} sc1 lds")
        t_y = e.tvm()
        self.uv_mfmas(1)
        nh = int(self.o.get("wsph", 16))
        self.wsp_bg(0, 0); self.wsp_bg(1, 1)
        e.tick(nh)
        e.wait_vm(t_s)
        e("v_add_f32 v204, v204, v206\nv_add_f32 v205, v205, v207")
        self.allreduce_g2(204, 205, 5, 6, "add")
        self.stats_finish(204, 205, 448, 206, "mean")
        e(f"s_lshl_b32 s82, {s(sW)}, 7\ns_add_u32 s82, s82, {L_ST}\nv_lshlrev_b32 v7, 3, {v(vRho)}\nv_add_u32 v7, s82, v7")
        e("ds_write_b64 v7, v[206:207]")
        self.uv_extract(1)
        e.wait_vm(t_y)
        e.barrier()
        e(f"v_lshlrev_b32 v7, 3, {v(vRho)}\nv_add_u32 v7, {L_ST}, v7")
        for tt in range(4): e(f"ds_read_b64 {v(self.ST1R+2*tt,2)}, v7 offset:{tt*128}")

    def p4_gemm(self, part, tick_every, first=0, last=14, pre=None):
        e = self.e
        base = self.WZ2 if part else self.WZ1
        A = self.A2 if part else self.A1
        e(f"v_add_u32 v7, {L_Y}, {v(vL16)}")
        self.gemm_loop(last, lambda st: [f"ds_read_b128 {v(self.YR + ((st % 3)*4 + tt)*4, 4)}, v7 offset:{tt*14336 + st*1024}" for tt in range(4)],
                       lambda st: [f"{MF} {v(A + (tl*4+tt)*4, 4)}, {a(base + (tl*14+st)*4, 4)}, {v(self.YR + ((st % 3)*4 + tt)*4, 4)}, {v(A + (tl*4+tt)*4, 4) if st else 0}"
                                   for tl in range(2) for tt in range(4)],
                       depth=2, tick_every=tick_every, first=first, pre=pre)

    def gelu_consts(self):
        e = self.e
        c = 2.0 * 0.7978845608028654 * 1.4426950408889634
        e(f"s_mov_b32 s68, {lit(-c*0.044715)}\ns_mov_b32 s69, {lit(-c)}\ns_mov_b32 s70, 1.0\ns_mov_b32 s71, 1.0")

    def p4_act(self, part, tick=True):
        e = self.e
        A = self.A2 if part else self.A1
        k0 = 0 if part else 2
        T = 208
        items = [(tl, tt) for tl in range(2) for tt in range(4)]
        for tl, tt in items:
            st = v(self.ST1R + 2*tt, 2)
            X = [v(A + (tl*4+tt)*4 + 2*q, 2) for q in range(2)]
            U = [v(self.UU + 4*(k0+tl) + 2*q, 2) for q in range(2)]
            V_ = [v(self.VV + 4*(k0+tl) + 2*q, 2) for q in range(2)]
            t = [T + 4*((tl*4+tt) & 1) + 2*q for q in range(2)]
            for q in range(2): e(f"v_pk_fma_f32 {X[q]}, {U[q]}, {st}, {X[q]} op_sel:[0,1,0] op_sel_hi:[1,1,1] neg_lo:[0,1,0] neg_hi:[0,1,0]")
            for q in range(2): e(f"v_pk_fma_f32 {X[q]}, {X[q]}, {st}, {V_[q]} op_sel:[0,0,0] op_sel_hi:[1,0,1]")
            for q in range(2): e(f"v_pk_mul_f32 {v(t[q],2)}, {X[q]}, {X[q]}")
            for q in range(2): e(f"v_pk_fma_f32 {v(t[q],2)}, {v(t[q],2)}, s[68:69], s[68:69] op_sel:[0,0,1] op_sel_hi:[1,0,1]")
            for q in range(2): e(f"v_pk_mul_f32 {v(t[q],2)}, {v(t[q],2)}, {X[q]}")
            for q in range(2): e(f"v_exp_f32 {v(t[q])}, {v(t[q])}\nv_exp_f32 {v(t[q]+1)}, {v(t[q]+1)}")
            if tick: e.tick(getattr(self, "act_ticks", 2) - 1)
            for q in range(2): e(f"v_pk_add_f32 {v(t[q],2)}, {v(t[q],2)}, s[70:71]")
            for q in range(2): e(f"v_rcp_f32 {v(t[q])}, {v(t[q])}\nv_rcp_f32 {v(t[q]+1)}, {v(t[q]+1)}")
            if tick: e.tick()
            for q in range(2): e(f"v_pk_mul_f32 {X[q]}, {X[q]}, {v(t[q],2)}")

    def p4_z2_stats(self):
        e = self.e
        A = self.A2
        SS, QQ = 208, 216
        for tt in range(4):
            S_, Q_ = v(SS+2*tt, 2), v(QQ+2*tt, 2)
            xs = [A + (tl*4+tt)*4 + 2*q for tl in range(2) for q in range(2)]
            e(f"v_pk_add_f32 {S_}, {v(xs[0],2)}, {v(xs[1],2)}\nv_pk_mul_f32 {Q_}, {v(xs[0],2)}, {v(xs[0],2)}")
            for x0, x1 in zip(xs[2:] + [None], xs[1:]):
                if x0 is not None: e(f"v_pk_add_f32 {S_}, {S_}, {v(x0,2)}")
                e(f"v_pk_fma_f32 {Q_}, {v(x1,2)}, {v(x1,2)}, {Q_}")
        for tt in range(4):
            e(f"v_add_f32 {v(SS+2*tt)}, {v(SS+2*tt)}, {v(SS+2*tt+1)}\nv_add_f32 {v(QQ+2*tt)}, {v(QQ+2*tt)}, {v(QQ+2*tt+1)}")
        self.reduce4(SS, SS+2, SS+4, SS+6)
        self.reduce4(QQ, QQ+2, QQ+4, QQ+6)
        e(f"v_mov_b32 {v(SS+1)}, {v(QQ)}")
        e(f"s_lshl_b32 s82, {s(sW)}, 9\ns_add_u32 s82, s82, {L_ST + 1024}\nv_lshlrev_b32 v7, 3, {v(vLane)}\nv_add_u32 v7, s82, v7")
        e(f"ds_write_b64 v7, {v(SS,2)}")
        e(f"v_lshlrev_b32 v7, 9, {v(vG)}\nv_lshlrev_b32 v8, 3, {v(vRho)}\nv_add_u32 v7, v7, v8\ns_lshl_b32 s82, {s(sW)}, 7\ns_add_u32 s82, s82, {L_ST + 1024}\nv_add_u32 v7, s82, v7")
        e(f"s_lshl_b32 s82, {s(sCl)}, 3\ns_add_u32 s82, s82, {s(sJ)}\ns_lshl_b32 s82, s82, 10\ns_lshl_b32 s83, {s(sW)}, 8\ns_add_u32 s82, s82, s83\ns_add_u32 s84, s82, {WS_ST2}")
        e(f"v_lshlrev_b32 v8, 4, {v(vRho)}")
        e.barrier()
        t = e.ds(f"ds_read_b64 {v(SS,2)}, v7")
        e.wait_lg(t)
        self.allreduce_g2(SS, SS+1, 5, 6, "add")
        e(f"v_mov_b32 {v(SS+2)}, {v(SS+1)}\nv_mov_b32 {v(SS+1)}, {s(sN)}\nv_mov_b32 {v(SS+3)}, {s(sN)}")
        e("s_mov_b32 exec_lo, 0xffff\ns_mov_b32 exec_hi, 0")
        e(f"buffer_store_dwordx4 {v(SS,4)}, v8, {srd(SWS)}, s84 offen sc1")
        e("s_mov_b64 exec, -1")

    def p4_z1_pack(self):
        e = self.e
        for tl in range(2):
            for tt in range(4):
                X = self.A1 + (tl*4+tt)*4
                P = self.Z1P + (tl*4+tt)*2
                e(f"v_cvt_pk_bf16_f32 {v(P)}, {v(X)}, {v(X+1)}\nv_cvt_pk_bf16_f32 {v(P+1)}, {v(X+2)}, {v(X+3)}")
        e(f"s_lshl_b32 s82, {s(sW)}, 12\ns_add_u32 s82, s82, {L_TR}\nv_add_u32 v7, s82, {v(vL16)}")
        for k in range(4): e(f"ds_write_b128 v7, {v(self.Z1P+4*k,4)} offset:{k*1024}")
        e.wait_lg(e.tlg())

    def st2_address(self):
        e = self.e
        e(f"v_lshlrev_b32 v204, 11, {v(vG)}\nv_lshlrev_b32 v205, 4, {v(vRho)}\nv_add_u32 v204, v204, v205")
        e(f"s_lshl_b32 s82, {s(sCl)}, 13\ns_lshl_b32 s83, {s(sW)}, 8\ns_add_u32 s82, s82, s83\ns_add_u32 s64, s82, {WS_ST2}")

    def st2_loads(self):
        e = self.e
        e(f"buffer_load_dwordx4 v[208:211], v204, {srd(SWS)}, s64 offen sc1")
        self.t_st2 = e.vm(f"buffer_load_dwordx4 v[212:215], v204, {srd(SWS)}, s64 offen offset:1024 sc1")

    def p4_z2_publish(self):
        e = self.e
        if not self.o.get("st2step"): self.st2_address()
        e(f"s_lshl_b32 s82, {s(sW)}, 12\ns_add_u32 s82, s82, {L_TR}")
        e(f"v_lshrrev_b32 v8, 2, {v(vRho)}\nv_xor_b32 v8, v8, {v(vG)}\nv_lshlrev_b32 v8, 3, v8\nv_lshlrev_b32 v9, 5, {v(vRho)}\nv_add_u32 v8, v8, v9\nv_add_u32 v8, s82, v8")
        e(f"v_lshrrev_b32 v9, 2, {v(vRho)}\nv_lshlrev_b32 v10, 2, {v(vG)}\nv_add_u32 v9, v9, v10\nv_lshlrev_b32 v9, 5, v9\nv_and_b32 v10, 3, {v(vRho)}\nv_xor_b32 v10, v10, {v(vG)}\nv_lshlrev_b32 v10, 3, v10\nv_add_u32 v9, v9, v10\nv_add_u32 v9, s82, v9")
        e(f"v_lshlrev_b32 v7, 3, {v(vRho)}\nv_add_u32 v7, {L_ST + 512}, v7\ns_lshl_b32 s82, {s(sW)}, 7\nv_add_u32 v10, s82, v7")
        for tl in range(2):
            e(f"s_lshl_b32 s82, {s(sJ)}, 6\ns_lshl_b32 s83, {s(sCl)}, 1\ns_add_u32 s82, s82, s83\ns_mul_i32 s82, s82, 7\ns_lshl_b32 s83, {s(sW)}, 1\ns_add_u32 s83, s83, {tl}\ns_add_u32 s82, s82, s83")
            e(f"s_lshl_b32 s82, s82, 10\ns_add_u32 s82, s82, {WS_Z}\ns_cmp_lt_u32 s83, 7\ns_cselect_b32 {s(84+2*tl)}, s82, {OOB}\ns_add_u32 {s(85+2*tl)}, {s(84+2*tl)}, 7168")
        e(f"s_lshl_b32 s82, {s(sJ)}, 7\ns_lshl_b32 s83, {s(sCl)}, 2\ns_add_u32 s66, s82, s83\ns_add_u32 s66, s66, {WS_F5}")
        e(f"s_lshl_b32 s83, {s(sW)}, 5\ns_add_u32 s62, s82, s83\ns_add_u32 s62, s62, {WS_F5}")
        if self.o.get("st2step"):
            e.wait_vm(self.t_st2)
            Lok = e.label("st2ok")
            self.tags_differ([209, 211, 213, 215])
            if self.o.get("forcelate"): e("s_cmp_eq_u32 s2, 9999")
            else: e("s_cmp_eq_u64 vcc, 0")
            e(f"s_cbranch_scc1 {Lok}")
            st = e.snap()
            self.poll([(208, 4, 204, "s64", 0), (212, 4, 204, "s64", 1024)], [(209, None), (211, None), (213, None), (215, None)], stem="st2")
            e.restore(st)
            e(f"{Lok}:")
        else:
            self.poll([(208, 4, 204, "s64", 0), (212, 4, 204, "s64", 1024)], [(209, None), (211, None), (213, None), (215, None)], stem="st2")
        self.stamp("st2poll")
        e("v_add_f32 v208, v208, v212\nv_add_f32 v209, v210, v214")
        self.allreduce_g2(208, 209, 5, 6, "add")
        self.stats_finish(208, 209, 896, 210, "nmr")
        e("ds_write_b64 v10, v[210:211]")
        e.barrier()
        tks = [e.ds(f"ds_read_b64 {v(self.ST2R+2*tt,2)}, v7 offset:{tt*128}") for tt in range(4)]
        P = 208
        for tt in range(4):
            e.wait_lg(tks[tt])
            for tl in range(2):
                X = self.A2 + (tl*4+tt)*4
                st = v(self.ST2R + 2*tt, 2)
                for q in range(2):
                    e(f"v_pk_fma_f32 {v(X+2*q,2)}, {v(X+2*q,2)}, {st}, {st} op_sel:[0,0,1] op_sel_hi:[1,0,1]")
                p = P + 2*((tt*2+tl) % 4)
                e(f"v_cvt_pk_bf16_f32 {v(p)}, {v(X)}, {v(X+1)}\nv_cvt_pk_bf16_f32 {v(p+1)}, {v(X+2)}, {v(X+3)}")
                e(f"ds_write_b64 v8, {v(p,2)} offset:{(tl*4+tt)*512}")
        FR = 216
        e.wait_lg(e.tlg())
        tk = {}
        for tl in range(2):
            for b in range(2):
                for tau in range(2):
                    tk[tl, b] = e.ds(f"ds_read_b64_tr_b16 {v(FR + (tl*2+b)*4 + 2*tau, 2)}, v9 offset:{(tl*4 + 2*b + tau)*512}")
        for tl in range(2):
            e.wait_lg(tk[tl, 0])
            e(f"buffer_store_dwordx4 {v(FR + (tl*2)*4, 4)}, {v(vL16)}, {srd(SWS)}, {s(84+2*tl)} offen sc1")
            e.wait_lg(tk[tl, 1])
            e(f"buffer_store_dwordx4 {v(FR + (tl*2+1)*4, 4)}, {v(vL16)}, {srd(SWS)}, {s(85+2*tl)} offen sc1")
        self.publish("s66", pre=int(self.o.get("z_pre", 0)), name="z", fast=False)

    A5, ZR, BSP, ZD = 16, 128, 240, 4
    Z1R = 144
    def wa(self, st): return (128 + 16*st) % 256
    def wsp_setup(self):
        e = self.e
        e(f"v_lshrrev_b32 v7, 5, {v(vLane)}\nv_lshlrev_b32 v7, 3, v7\nv_bfe_u32 v8, {v(vLane)}, 3, 2\nv_add_u32 v7, v7, v8\nv_lshlrev_b32 v7, 12, v7")
        e(f"v_and_b32 v12, 7, {v(vLane)}\nv_xor_b32 v12, v12, {v(vG)}\nv_xor_b32 v13, 4, v12\nv_lshlrev_b32 v12, 4, v12\nv_lshlrev_b32 v13, 4, v13")
        e("v_add_u32 v12, v7, v12\nv_add_u32 v13, v7, v13")
        e(f"s_lshl_b32 s72, {s(sCl)}, 18\ns_lshl_b32 s82, {s(sW)}, 10\ns_add_u32 s72, s72, s82")
        e(f"s_lshl_b32 s73, {s(sW)}, 13\ns_add_u32 s73, s73, {L_WSP}")
        e(f"v_lshrrev_b32 v14, 1, {v(vRho)}\nv_xor_b32 v14, v14, {v(vG)}\nv_xor_b32 v15, 4, v14\nv_lshlrev_b32 v14, 4, v14\nv_lshlrev_b32 v15, 4, v15")
        e(f"v_lshlrev_b32 v7, 7, {v(vRho)}\nv_add_u32 v14, v14, v7\nv_add_u32 v15, v15, v7\nv_add_u32 v14, s73, v14\nv_add_u32 v15, s73, v15")

    def wsp_bg(self, b, slot):
        e = self.e
        for rg in range(8):
            row = 32*(rg >> 2) + 16*(rg & 1) + 4*((rg >> 1) & 1)
            e.bg_add(("wsp", b), f"s_add_u32 m0, s73, {slot*32768 + rg*1024}\ns_add_u32 s81, s72, {row*4096 + 128*b}\nbuffer_load_dwordx4 {v(12 + (rg & 1))}, {srd(SWSP)}, s81 offen lds")

    def wsp_park(self, b, slot):
        e = self.e
        e.wait_bg(("wsp", b))
        t = None
        for sp in range(2):
            if slot >= 2: e(f"v_add_u32 v7, 65536, {v(14+sp)}")
            for tt in range(4):
                t = e.ds(f"ds_read_b128 {a(self.wa(2*b+sp) + 4*tt, 4)}, {v(7 if slot >= 2 else 14+sp)} offset:{(slot & 1)*32768 + tt*2048}")
        return t

    def bsp_loads(self):
        e = self.e
        e(f"v_lshrrev_b32 v6, 2, {v(vRho)}\nv_lshlrev_b32 v6, 3, v6\nv_and_b32 v7, 3, {v(vRho)}\nv_add_u32 v6, v6, v7\nv_lshlrev_b32 v6, 1, v6")
        e(f"s_lshl_b32 s82, {s(sCl)}, 7")
        for tt in range(4):
            e(f"buffer_load_ushort {v(self.BSP+tt)}, v6, {srd(SBSP)}, s82 offen offset:{2*(32*(tt>>1) + 4*(tt&1))}")

    def p5_main(self):
        e = self.e
        ZD = int(self.o.get('zd', self.ZD))
        e(f"s_lshl_b32 s82, {s(sJ)}, 6\ns_lshl_b32 s83, {s(sW)}, 4\ns_add_u32 s82, s82, s83\ns_mul_i32 s74, s82, 7168\ns_add_u32 s74, s74, {WS_Z}")
        self.spoll("s62", "f5")
        self.stamp("f5poll")
        e("v_add_u32 v10, 65536, v14\nv_add_u32 v11, 65536, v15")
        tz = {}
        def zgroups(st):
            out = []
            for t in range(7):
                pre = f"s_add_u32 s82, s74, {st*7168}\n" if t == 0 else (f"s_add_u32 s82, s74, {st*7168 + 4096}\n" if t == 4 else "")
                out.append(pre + f"buffer_load_dwordx4 {v(self.ZR + ((st % ZD)*7 + t)*4, 4)}, {v(vL16)}, {srd(SWS)}, s82 offen offset:{(t & 3)*1024} sc1")
            return out
        for st in range(ZD - 1):
            for g in zgroups(st): e(g)
            tz[st] = e.tvm()
        def mf(st, t, tt):
            D = v(self.A5 + (t*4+tt)*4, 4)
            return f"{MF} {D}, {v(self.ZR + ((st % ZD)*7 + t)*4, 4)}, {a(self.wa(st) + 4*tt, 4)}, {D if st else 0}"
        parks = []
        NT = int(self.o.get('nt5', 13))
        for st in range(NT):
            zs = zgroups(st + ZD - 1) if st + ZD - 1 < 16 else []
            e.wait_vm(tz[st])
            if st in (0, 2, 4, 6, 8, 10, 12): self.stamp(f"p5s{st}")
            if self.o.get("latepark"):
                if st in (5, 7, 9, 11):
                    b = 4 + (st - 5) // 2
                    parks = self.wsp_park_list(b, (2, 3, 0, 1)[b - 4])
                if st in (8, 10, 12): e.wait_lg(e.tlg())
            else:
                if st == 2: parks = self.wsp_park_list(4, 2) + self.wsp_park_list(5, 3)
                if st == 5: parks = self.wsp_park_list(6, 0) + self.wsp_park_list(7, 1)
                if st == 8: e.wait_lg(e.tlg())
                if st == 10 and not self.o.get("ownred"): e.barrier()
            k = 0
            for t in range(7):
                for tt in range(4):
                    e(mf(st, t, tt))
                    k += 1
                    if k % 4 == 1 and zs: e(zs.pop(0))
                    elif k % 2 == 0 and parks: e.ds(parks.pop(0))
                    elif k % 7 == 3 and e.bg_left(): e.tick()
            if st + ZD - 1 < 16: tz[st + ZD - 1] = e.tvm()
        assert not parks
        if self.o.get("latepark"): e.barrier()
        e.wait_vm(tz[15])
        self.stamp("p5s13")
        own = self.o.get("ownred")
        if own:
            e(f"s_lshl_b32 s82, {s(sW)}, 13\nv_add_u32 v7, s82, {v(vL16)}\nv_add_u32 v6, 65536, v7")
        else:
            e(f"s_mul_i32 s82, {s(sW)}, 28672\ns_add_u32 s82, s82, {L_RED}\nv_add_u32 v7, s82, {v(vL16)}")
        def wr(k):
            if own: return f"ds_write_b128 {v(6 if k >= 16 else 7)}, {v(self.A5 + 4*k, 4)} offset:{((k >> 3) & 1)*32768 + (k & 7)*1024}"
            return f"ds_write_b128 v7, {v(self.A5 + 4*k, 4)} offset:{k*1024}"
        pend = []
        self.wout_bg()
        nw = 20 if NT == 13 else 21
        if NT == 14: nw = 21
        for t in range(7):
            k = 0
            for st in range(NT, 16):
                for tt in range(4):
                    e(mf(st, t, tt))
                    if NT == 13: wslot, tslot = (k >= 5 and k % 2 == 1), k in (0, 2, 4)
                    else: wslot, tslot = k >= 4, k in (0, 1, 2)
                    if wslot and pend: e.ds(pend.pop(0))
                    elif tslot and nw > 0:
                        e.tick(); nw -= 1
                    k += 1
            pend = [wr(t*4+tt) for tt in range(4)]
        for w_ in pend: e.ds(w_)

    def wsp_park_list(self, b, slot):
        e = self.e
        e.wait_bg(("wsp", b))
        out = []
        for sp in range(2):
            for tt in range(4):
                out.append(f"ds_read_b128 {a(self.wa(2*b+sp) + 4*tt, 4)}, {v((10 if slot >= 2 else 14) + sp)} offset:{(slot & 1)*32768 + tt*2048}")
        return out

    def wout_bg(self):
        e = self.e
        e(f"s_mul_i32 s75, {s(sJ)}, 114688\ns_mul_i32 s83, {s(sW)}, 28672\ns_add_u32 s75, s75, s83\ns_add_u32 s75, s75, {WS_WOUT}")
        for k in range(7):
            for ft in range(4):
                e.bg_add("wout", f"s_add_u32 s81, s75, {k*4096}\nbuffer_load_dwordx4 {a((k*4+ft)*4, 4)}, {v(vL16)}, {srd(SWS)}, s81 offen offset:{ft*1024} sc1")

    def p5_epilogue(self):
        e = self.e
        e(f"s_lshl_b32 s82, {s(sW)}, 12\ns_add_u32 s82, s82, {L_TR}\nv_add_u32 v8, s82, {v(vL16)}")
        for k in range(4): e(f"ds_read_b128 {v(self.Z1R+4*k,4)}, v8 offset:{k*1024}")
        if self.o.get("ownred"):
            e(f"s_lshl_b32 s82, {s(sW)}, 15\nv_add_u32 v7, s82, {v(vL16)}")
        else:
            e(f"s_lshl_b32 s82, {s(sW)}, 13\ns_add_u32 s82, s82, {L_RED}\nv_add_u32 v7, s82, {v(vL16)}\nv_add_u32 v8, 57344, v7")
        for tt in range(4): e(f"v_lshlrev_b32 {v(self.BSP+tt)}, 16, {v(self.BSP+tt)}")
        e(f"v_and_b32 v9, 1, {v(vG)}\nv_mul_u32_u24 v9, 28672, v9\nv_lshrrev_b32 v10, 1, {v(vG)}\nv_lshlrev_b32 v10, 8, v10\nv_add_u32 v9, v9, v10\nv_lshlrev_b32 v10, 4, {v(vRho)}\nv_add_u32 v9, v9, v10")
        e.barrier()
        R = 16
        tk = {}
        def rd(idx):
            for src in range(4):
                if self.o.get("ownred"): tk[idx] = e.ds(f"ds_read_b128 {v(R + (idx*4+src)*4, 4)}, v7 offset:{src*8192 + idx*1024}")
                else: tk[idx] = e.ds(f"ds_read_b128 {v(R + (idx*4+src)*4, 4)}, {v(7 + (src >> 1))} offset:{(src & 1)*28672 + idx*1024}")
        order = [tl*4 + tt for tl in range(2) for tt in range(4)]
        for idx in order[:3]: rd(idx)
        Q = 216
        for n, idx in enumerate(order):
            tl, tt = idx >> 2, idx & 3
            if n + 3 < 8: rd(order[n+3])
            e.wait_lg(tk[idx])
            r = R + idx*16
            for q in range(2): e(f"v_pk_add_f32 {v(r+2*q,2)}, {v(r+2*q,2)}, {v(r+4+2*q,2)}\nv_pk_add_f32 {v(r+8+2*q,2)}, {v(r+8+2*q,2)}, {v(r+12+2*q,2)}")
            for q in range(2): e(f"v_pk_add_f32 {v(r+2*q,2)}, {v(r+2*q,2)}, {v(r+8+2*q,2)}")
            for q in range(2):
                z = self.Z1R + idx*2 + q
                e(f"v_lshlrev_b32 {v(r+4+2*q)}, 16, {v(z)}\nv_and_b32 {v(r+5+2*q)}, {s(sHI)}, {v(z)}")
            for k in range(4): e(f"v_add_f32 {v(r+k)}, {v(r+k)}, {v(self.BSP+tt)}")
            for q in range(2): e(f"v_pk_mul_f32 {v(r+2*q,2)}, {v(r+2*q,2)}, {v(r+4+2*q,2)}")
            for q in range(2): e(f"v_cvt_pk_bf16_f32 {v(Q + (tl*2 + (tt >> 1))*4 + 2*(tt & 1) + q)}, {v(r+2*q)}, {v(r+2*q+1)}")
            if tt & 1:
                b = tt >> 1
                if b == 0:
                    e(f"s_lshl_b32 s83, {s(sW)}, 1\ns_add_u32 s83, s83, {tl}\ns_mul_i32 s84, {s(sJ)}, 14\ns_lshl_b32 s85, s83, 1\ns_add_u32 s84, s84, s85\ns_lshl_b32 s84, s84, 8")
                    e(f"s_lshl_b32 s85, {s(sCl)}, 2\ns_mul_i32 s85, s85, 28672\ns_add_u32 s84, s84, s85\ns_add_u32 s84, s84, {WS_G}\ns_cmp_lt_u32 s83, 7\ns_cselect_b32 s84, s84, {OOB}\ns_add_u32 s85, s84, 57344")
                q = Q + (tl*2+b)*4
                e(f"v_permlane16_swap_b32 {v(q)}, {v(q+2)}\nv_permlane16_swap_b32 {v(q+1)}, {v(q+3)}")
                e(f"buffer_store_dwordx4 {v(q,4)}, v9, {srd(SWS)}, {('s84','s85')[b]} offen sc1")
        e(f"s_lshl_b32 s82, {s(sCl)}, 7\ns_add_u32 s62, s82, {WS_F6}\ns_lshl_b32 s83, {s(sJ)}, 2\ns_add_u32 s66, s62, s83")
        self.publish("s66", pre=int(self.o.get("g_pre", 8)), post=int(self.o.get("g_post", 0)), name="g")

    def p6(self):
        e = self.e
        GF, ACC = 16, 128
        e(f"s_lshl_b32 s82, {s(sCl)}, 2\ns_mul_i32 s82, s82, 28672\ns_mul_i32 s83, {s(sW)}, 7168\ns_add_u32 s82, s82, s83\ns_add_u32 s82, s82, {WS_G}")
        for tt in range(4): e(f"s_add_u32 {s(76+tt)}, s82, {tt*28672}")
        GB = 192
        e(f"v_lshlrev_b32 v8, 4, {v(vG)}\ns_mul_i32 s82, {s(sJ)}, 112\ns_add_u32 s82, s82, {L_M + 2688}\nv_add_u32 v8, s82, v8")
        e(f"ds_read_b128 {v(GB,4)}, v8\nds_read_b128 {v(GB+4,4)}, v8 offset:64")
        self.row_offset(9)
        self.spoll("s62", "f6", fast=True)
        self.stamp("f6poll")
        tg = {}
        for k in range(7):
            for tt in range(4):
                if k == 4: e(f"s_add_u32 {s(76+tt)}, {s(76+tt)}, 4096")
                tg[k] = e.vm(f"buffer_load_dwordx4 {v(GF + (k*4+tt)*4, 4)}, {v(vL16)}, {srd(SWS)}, {s(76+tt)} offen offset:{(k & 3)*1024} sc1")
        XU, GU = 200, 216
        for k in range(8):
            e(f"v_lshlrev_b32 {v(XU+2*k)}, 16, {v(self.X1+k)}\nv_and_b32 {v(XU+2*k+1)}, {s(sHI)}, {v(self.X1+k)}")
            e(f"v_lshlrev_b32 {v(GU+2*k)}, 16, {v(GB+k)}\nv_and_b32 {v(GU+2*k+1)}, {s(sHI)}, {v(GB+k)}")
        def mf(k, ft, tt):
            D = v(ACC + (ft*4+tt)*4, 4)
            return f"{MF} {D}, {a((k*4+ft)*4, 4)}, {v(GF + (k*4+tt)*4, 4)}, {D if k else 0}"
        N6 = int(self.o.get("p6nt", 5))
        for k in range(N6):
            e.wait_vm(tg[k])
            for ft in range(4):
                for tt in range(4): e(mf(k, ft, tt))
        e(f"s_lshl_b32 s82, {s(sW)}, 14\ns_add_u32 s82, s82, {L_RED}\nv_add_u32 v7, s82, {v(vL16)}")
        e.wait_vm(tg[6])
        pend = []
        for ft in range(4):
            n = 0
            ms = [mf(k, ft, tt) for k in range(N6, 7) for tt in range(4)]
            for m in ms:
                e(m)
                if pend and n >= len(ms) - 4: e.ds(pend.pop(0))
                n += 1
            pend = [f"ds_write_b128 v7, {v(ACC + (ft*4+tt)*4, 4)} offset:{(ft*4+tt)*1024}" for tt in range(4)]
        for w_ in pend: e.ds(w_)
        self.stamp("p6gemm")
        e(f"s_lshl_b32 s82, {s(sW)}, 10\ns_add_u32 s82, s82, {L_RED}\nv_add_u32 v7, s82, {v(vL16)}")
        e.barrier()
        R = 16
        tk = {}
        for ft in range(4):
            for src in range(4):
                tk[ft] = e.ds(f"ds_read_b128 {v(R + (ft*4+src)*4, 4)}, v7 offset:{src*16384 + ft*4096}")
        OP = 112
        for ft in range(4):
            e.wait_lg(tk[ft])
            r = R + ft*16
            for q in range(2): e(f"v_pk_add_f32 {v(r+2*q,2)}, {v(r+2*q,2)}, {v(r+4+2*q,2)}\nv_pk_add_f32 {v(r+8+2*q,2)}, {v(r+8+2*q,2)}, {v(r+12+2*q,2)}")
            for q in range(2): e(f"v_pk_add_f32 {v(r+2*q,2)}, {v(r+2*q,2)}, {v(r+8+2*q,2)}")
            for q in range(2):
                k = 2*ft + q
                e(f"v_pk_fma_f32 {v(r+2*q,2)}, {v(GU+2*k,2)}, {v(r+2*q,2)}, {v(XU+2*k,2)}")
            for q in range(2): e(f"v_cvt_pk_bf16_f32 {v(OP+2*ft+q)}, {v(r+2*q)}, {v(r+2*q+1)}")
            if ft == 1: e(f"buffer_store_dwordx4 {v(OP,4)}, v9, {srd(SOUT)}, s67 offen {self.o.get('ost', '').replace('_', ' ')}")
        e("s_mov_b32 exec_hi, 0x0000ffff")
        e(f"buffer_store_dwordx4 {v(OP+4,4)}, v9, {srd(SOUT)}, s67 offen offset:64 {self.o.get('ost', '').replace('_', ' ')}")
        e("s_mov_b32 exec_hi, -1")
        for k in range(int(self.o.get("dummy", 0))): e(f"v_fma_f32 v{16 + k % 8}, v30, v30, v{16 + k % 8}")
        self.stamp("end")
        self.stamps_out()
        e(f"s_add_u32 s82, s2, {s(sW)}\ns_cmp_eq_u32 s82, 0\ns_cbranch_scc0 L_end")
        e(f"v_mov_b32 v5, {s(sN)}\ns_mov_b64 exec, 1\nbuffer_store_dword v5, off, {srd(SWS)}, 0 sc1")

    def build(self):
        e = self.e
        S = self.stamp
        self.prologue()
        S("start")
        ke = int(self.o.get("kearly", 0))
        if self.o.get("xfirst"):
            t0 = e.tvm()
            self.x_dma()
            t1 = e.tvm()
            self.gemv_loads()
        else:
            self.gemv_loads()
            t0 = e.tvm()
            self.x_dma(0, int(self.o.get("xsplit", 7)))
            t1 = t0
        ppa = self.o.get("ppafter")
        if not ppa:
            self.prepass_issue()
            t_pp_n = e.tvm()
        self.wqkv_setup()
        self.wqkv_bg(1, L_K, "wk")
        e.tick(ke)
        S("issued")
        xs = int(self.o.get("xsplit", 7))
        if xs == 7: self.nonce(e.tvm() - t0)
        self.gemv_compute(e.tvm() - t1)
        if xs < 7:
            self.x_dma(xs, 7)
            self.nonce(e.tvm() - t0)
        if ppa:
            if xs == 7: e.wait_vm(self.t_x)
            self.prepass_issue()
            t_pp_n = e.tvm()
        S("gemv")
        late = self.o.get("pplate")
        if not late:
            t_pps = self.prepass_finish(t_pp_n)
            S("ppfin")
        if not self.o.get("xprog"): e.wait_vm(self.t_x)
        if not late: e.barrier()
        if self.o.get("vin") == "ln": self.wqkv_bg(2, L_V, "wv")
        S("xland")
        self.ln1()
        if not late: self.prepass_flag(t_pps)
        S("ln1a")
        self.ln1_finish()
        e.bg_flush()
        S("ln1")
        if late: t_pps = self.prepass_finish(t_pp_n)
        self.mod_wait1()
        e.wait_bg("wk")
        e.barrier()
        S("modpoll")
        if self.o.get("vin") != "ln": self.wqkv_bg(2, L_V, "wv")
        self.modulate()
        e.bg_flush()
        if self.o.get("pplate"): self.prepass_flag(t_pps)
        e.barrier()
        S("modulate")
        self.h_read()
        self.kvq_setup()
        e.barrier()
        S("hread")
        self.wqkv_bg(0, L_X, "wq")
        acc = self.qkv_gemm("k", L_K)
        S("kloop")
        e.wait_bg("wv")
        e.barrier()
        self.k_epilogue(acc)
        S("kgemm")
        t_late = self.late_loads()
        acc = self.qkv_gemm("v", L_V)
        S("vloop")
        e.wait_bg("wq")
        e.barrier()
        self.v_epilogue(acc)
        t_vst = e.tvm()
        S("vgemm")
        fs = int(self.o.get("f1step", 99))
        def hook(st):
            if st == fs:
                e.wait_vm(t_vst)
                self.flag_store("s61")
        acc = self.qkv_gemm("q", L_X, hook=hook)
        S("qloop")
        if fs > 13:
            e.wait_vm(t_vst)
            self.flag_store("s61")
        self.late_check(t_late)
        self.q_epilogue(acc)
        S("qgemm")
        e.barrier()
        self.att_bias()
        e("s_sub_u32 s62, s61, 32")
        self.att_offsets()
        self.spoll("s62", "f1", blk="s59")
        S("kpoll")
        for key, txt in self.att_load_groups(0, 0, "k"):
            e.bg_add(key, txt); e.tick()
        for key, txt in self.att_load_groups(64, 2048, "v"): e.bg_add(key, txt)
        self.wo_bg()
        self.xslice_bg()
        self.att_scores()
        S("scores")
        self.att_softmax_pv(int(self.o.get('smt', 12)))
        e.bg_flush()
        S("softmax")
        self.win_bg(1, 77)
        self.att_epilogue()
        S("opub")
        if self.end_if_stop("o"): return
        self.wsp_setup()
        bgq, e.bgq = e.bgq, []
        self.p3(bgq)
        S("ypub")
        if self.end_if_stop("y"): return
        e.bg_flush()
        self.gelu_consts()
        self.p4_head()
        S("p4head")
        self.win_bg(0, 77)
        self.p4_gemm(1, int(self.o.get("w1t", 4)))
        if not self.o.get("w1late"): e.bg_flush()
        else: e.bg_flush(("wsp", 1))
        S("z2gemm")
        self.wsp_park(0, 0); t = self.wsp_park(1, 1)
        self.p4_act(1, tick=bool(self.o.get("w1late")))
        e.bg_flush()
        S("z2act")
        self.p4_z2_stats()
        S("z2stats")
        e.wait_lg(t)
        self.wsp_bg(2, 0); self.wsp_bg(3, 1)
        self.uv_mfmas(0)
        split = int(self.o.get("z1split", 6))
        ss = int(self.o.get("st2step", 0))
        if ss: self.st2_address()
        self.p4_gemm(0, 2 if split < 14 else 4, 0, split, pre=(lambda st: self.st2_loads() if st == ss else None) if ss else None)
        e.bg_flush()
        S("z1a")
        if self.o.get("z_pre"):
            assert split == 14
            self.uv_extract(0)
            self.wsp_park(2, 0); self.wsp_park(3, 1)
            self.wsp_bg(4, 2); self.wsp_bg(5, 3)
            self.p4_z2_publish()
            S("zpub")
            if self.end_if_stop("z"): return
            self.wsp_bg(6, 0); self.wsp_bg(7, 1)
            self.act_ticks = int(self.o.get('actt', 3))
            self.p4_act(0)
        else:
            self.p4_z2_publish()
            S("zpub")
            if self.end_if_stop("z"): return
            if split < 14: self.p4_gemm(0, 0, split, 14)
            self.uv_extract(0)
            self.wsp_park(2, 0); t = self.wsp_park(3, 1)
            e.barrier()
            S("z1gemm")
            self.wsp_bg(4, 2); self.wsp_bg(5, 3); self.wsp_bg(6, 0); self.wsp_bg(7, 1)
            self.p4_act(0)
        self.p4_z1_pack()
        self.bsp_loads()
        if self.o.get("defer67"): e.bg_flush(("wsp", 5))
        else: e.bg_flush()
        S("z1act")
        self.p5_main()
        S("p5main")
        self.p5_epilogue()
        S("gpub")
        if self.end_if_stop("g"): return
        e.bg_flush()
        self.p6()

    def text(self):
        self.build()
        body = self.e.text()
        if self.o.get("nt"):
            sel = {"x": SX, "qkv": SWQKV, "mod": SWMOD, "wo": SWO, "win": SWIN, "wout": SWOUT, "wsp": SWSP}
            want = sel.keys() if self.o["nt"] in (1, "1", "all") else self.o["nt"].split("+")
            out = []
            for ln in body.split("\n"):
                if "buffer_load" in ln and any(srd(sel[k]) in ln for k in want):
                    ln = ln.replace(" lds", " nt lds") if ln.endswith(" lds") else ln + " nt"
                out.append(ln)
            body = "\n".join(out)
        hdr = open(os.path.join(os.path.dirname(os.path.abspath(__file__)), "header.txt")).read()
        doc = """;
; One persistent launch: 256 workgroups (one per CU, 160 KB LDS, 4 waves with 512 registers each).
;   start : silu(c) @ w_mod on 84 workgroups (published as {bf16 pair, tag} granules); the weights of the later GEMMs
;           are re-laid out once as MFMA fragments in d_ws; LayerNorm 1 + modulation; K, V, Q projections
;   attn  : K/V fragments of the 8 earlier 32-token blocks come through d_ws; exact softmax (true row maximum)
;   P4    : z = gelu(rstd*(y @ W_in - mean*u) + v)  (LayerNorm 2 folded: u = (1+cb) @ W_in, v = sb @ W_in); LayerNorm of z2
;   P5    : g = w_sp @ z2n + b (K split over the waves, w_sp fragments parked in AGPRs), gated = z1*g
; Hand-offs: sc1 stores, s_waitcnt vmcnt, flag word = tag; sc1 polls (bounded), sc1 loads.  The tag is derived from the
; Generated by the author's own generator scripts (straight-line code, counted waits).
"""
        return hdr + doc + f"""; @launch grid=(256,1,1) block=(256,1,1) lds={LDS_BYTES}
.amdgcn_target "amdgcn-amd-amdhsa--gfx950"
.text
.globl {NAME}
.p2align 8
.type {NAME},@function
{NAME}:
{body}L_end:
  s_endpgm
.section .rodata,"a"
.p2align 6
.amdhsa_kernel {NAME}
  .amdhsa_next_free_vgpr 512
  .amdhsa_next_free_sgpr 102
  .amdhsa_accum_offset 256
  .amdhsa_group_segment_fixed_size 0
  .amdhsa_kernarg_size 104
  .amdhsa_user_sgpr_count 2
  .amdhsa_user_sgpr_kernarg_segment_ptr 1
  .amdhsa_system_sgpr_workgroup_id_x 1
.end_amdhsa_kernel
"""

if __name__ == "__main__":
    stop = sys.argv[2] if len(sys.argv) > 2 and sys.argv[2] != "-" else None
    opts = dict(kv.split("=") if "=" in kv else (kv, 1) for kv in sys.argv[3:])
    g = Gen(stop=stop, opts=opts)
    open(sys.argv[1], "w").write(g.text())
    if opts.get("prof"): open(sys.argv[1] + ".stamps", "w").write(" ".join(g.stamps))
```
